```python
import torch

def _softmax(x, axis=-1):
    return torch.softmax(x, dim=axis)
def _gelu(x):
    return torch.nn.functional.gelu(x, approximate="tanh")
def _silu(x):
    return torch.nn.functional.silu(x)
def _sigmoid(x):
    return torch.sigmoid(x)
def _layernorm(x, axis=-1, eps=1e-5):
    m = x.mean(dim=axis, keepdim=True)
    v = x.var(dim=axis, keepdim=True, unbiased=False)
    return (x - m) / torch.sqrt(v + eps)
def _scatter_add(tgt, idx, src, axis=0):
    return tgt.clone().index_add_(axis, idx, src)
def _segment_sum(src, seg, n):
    out = torch.zeros((n,) + src.shape[1:], dtype=src.dtype)
    return out.index_add_(0, seg, src)
def _pad(x, pw):
    flat = tuple(v for pair in reversed(pw) for v in pair)
    return torch.nn.functional.pad(x, flat)

kernel_name = 'interleave_layers__ssm_conv_s4d__linear_kernel_hedgehog__prompt'

def setup_inputs():

    _w = (lambda a: (lambda t: t.to(torch.bfloat16) if t.is_floating_point() else t)(torch.as_tensor(a)))
    def _A_setup():
        Bsz, L, D, N = 1, 2048, 512, 128
        return {
            "u": _w((lambda *s: torch.randn(*s, dtype=torch.bfloat16) * 0.05)(Bsz, L, D)),
            "log_A_real": _w((lambda *s: torch.randn(*s, dtype=torch.bfloat16) * 3.2)(D, N) * 0.5),
            "A_imag": _w((lambda *s: torch.randn(*s, dtype=torch.bfloat16) * 0.05)(D, N) * 3.14),
            "C_real": _w((lambda *s: torch.randn(*s, dtype=torch.bfloat16) * 0.05)(D, N) / N ** 0.5),
            "C_imag": _w((lambda *s: torch.randn(*s, dtype=torch.bfloat16) * 0.05)(D, N) / N ** 0.5),
            "log_dt": _w((lambda *s: torch.randn(*s, dtype=torch.bfloat16) * 0.05)(D) * 0.5 - 4.0),
            "D_skip": _w((lambda *s: torch.randn(*s, dtype=torch.bfloat16) * 0.05)(D)),
        }
    _A_in = _A_setup()

    def _B_setup():
        B, S, D, H = 1, 2048, 512, 32
        Dh = D // H
        return {
            "x": _w((lambda *s: torch.randn(*s, dtype=torch.bfloat16) * 0.05)(B, S, D)),
            "wqkv": _w((lambda *s: torch.randn(*s, dtype=torch.bfloat16) * 0.4)(D, 3 * D)),
            "w_phi": _w((lambda *s: torch.randn(*s, dtype=torch.bfloat16) * 0.4)(H, Dh, Dh) * (Dh ** -0.5)),
            "wo": _w((lambda *s: torch.randn(*s, dtype=torch.bfloat16) * 0.05)(D, D)),
        }
    _B_in = _B_setup()

    return {
        "A_u": _A_in["u"],
        "A_log_A_real": _A_in["log_A_real"],
        "A_A_imag": _A_in["A_imag"],
        "A_C_real": _A_in["C_real"],
        "A_C_imag": _A_in["C_imag"],
        "A_log_dt": _A_in["log_dt"],
        "A_D_skip": _A_in["D_skip"],
        "B_x": _B_in["x"],
        "B_wqkv": _B_in["wqkv"],
        "B_w_phi": _B_in["w_phi"],
        "B_wo": _B_in["wo"],
    }

def reference(A_u, A_log_A_real, A_A_imag, A_C_real, A_C_imag, A_log_dt, A_D_skip, B_x, B_wqkv, B_w_phi, B_wo):
    def _A_ref(u, log_A_real, A_imag, C_real, C_imag, log_dt, D_skip):
        L = u.shape[1]
        dt = torch.exp(log_dt)
        A = -torch.exp(log_A_real) + 1j * A_imag
        C = (C_real + 1j * C_imag) * dt[:, None]
        pos = (lambda x, dt: x.to(dt))(torch.arange(L), log_dt.dtype)
        P = torch.exp((A * dt[:, None])[:, :, None] * pos[None, None, :])
        K = 2.0 * torch.einsum("dn,dnl->dl", C, P).real
        L2 = 2 * L
        u_t = (lambda x, *d: x.permute(*d))(u, 0, 2, 1)
        Kf = (lambda x, *a, **k: torch.fft.rfft(x.float(), *a, **k))(K, L2)
        Uf = (lambda x, *a, **k: torch.fft.rfft(x.float(), *a, **k))(u_t, L2)
        y = (lambda x, *a, **k: torch.fft.irfft(x, *a, **k).to(torch.bfloat16))(Uf * Kf[None, :, :], L2)[:, :, :L]
        y = (lambda x, *d: x.permute(*d))(y, 0, 2, 1)
        return y + u * D_skip[None, None, :]

    def _B_ref(x, wqkv, w_phi, wo):
        B, S, D = x.shape
        H = 32; Dh = D // H
        qkv = (lambda x, *d: x.permute(*d))((x @ wqkv).reshape(B, S, 3, H, Dh), 2, 0, 3, 1, 4)
        q, k, v = qkv[0], qkv[1], qkv[2]
        pq = torch.einsum("bhsd,hdf->bhsf", q, w_phi)
        pk = torch.einsum("bhsd,hdf->bhsf", k, w_phi)
        phi_q = torch.concatenate([_softmax(pq, axis=-1), _softmax(-pq, axis=-1)], axis=-1)
        phi_k = torch.concatenate([_softmax(pk, axis=-1), _softmax(-pk, axis=-1)], axis=-1)
        kv = torch.einsum("bhsf,bhsd->bhfd", phi_k, v)
        z  = torch.einsum("bhsf->bhf", phi_k)
        num = torch.einsum("bhqf,bhfd->bhqd", phi_q, kv)
        den = torch.einsum("bhqf,bhf->bhq", phi_q, z)[..., None] + 1e-6
        o = num / den
        return (lambda x, *d: x.permute(*d))(o, 0, 2, 1, 3).reshape(B, S, D) @ wo

    x = A_u
    x = x + _A_ref(_layernorm(x, axis=-1), A_log_A_real, A_A_imag, A_C_real, A_C_imag, A_log_dt, A_D_skip)
    x = x + _B_ref(_layernorm(x, axis=-1), B_wqkv, B_w_phi, B_wo)
    x = x + _A_ref(_layernorm(x, axis=-1), A_log_A_real, A_A_imag, A_C_real, A_C_imag, A_log_dt, A_D_skip)
    x = x + _B_ref(_layernorm(x, axis=-1), B_wqkv, B_w_phi, B_wo)
    return x
```

```python
import re

def v(i, n=1): return f"v{i}" if n == 1 else f"v[{i}:{i+n-1}]"
def a(i, n=1): return f"a{i}" if n == 1 else f"a[{i}:{i+n-1}]"
def s(i, n=1): return f"s{i}" if n == 1 else f"s[{i}:{i+n-1}]"

_reg_re = re.compile(r"^(-?)(\|?)(?:abs\()?([vas])(?:(\d+)|\[(\d+):(\d+)\])\)?\|?$")

def regs_of(op):
    op = op.strip()
    if op in ("vcc",): return {("s", "vcc_lo"), ("s", "vcc_hi")}
    if op in ("vcc_lo", "vcc_hi", "m0", "exec_lo", "exec_hi"): return {("s", op)}
    if op == "exec": return {("s", "exec_lo"), ("s", "exec_hi")}
    m = _reg_re.match(op)
    if not m: return set()
    k = m.group(3)
    if m.group(4) is not None: return {(k, int(m.group(4)))}
    return {(k, i) for i in range(int(m.group(5)), int(m.group(6)) + 1)}

TRANS = ("v_exp_f32", "v_log_f32", "v_rcp_f32", "v_rsq_f32", "v_sqrt_f32", "v_sin_f32", "v_cos_f32",
         "v_rcp_iflag_f32", "v_exp_f16", "v_rcp_f16")
VCCSET = {("s", "vcc_lo"), ("s", "vcc_hi")}
EXECSET = {("s", "exec_lo"), ("s", "exec_hi")}

def mfma_passes(op):
    if "4x4x4" in op: return 2
    if op.endswith("_f32") and ("32x32x2" in op): return 16
    if op.endswith("_f32") and ("16x16x4" in op): return 8
    if "32x32" in op: return 8
    if "16x16" in op: return 4
    raise ValueError(op)

class Ins:
    def __init__(self, text):
        self.text = text
        t = text.split(";")[0].strip()
        parts = t.split(None, 1)
        self.op = op = parts[0]
        rest = parts[1] if len(parts) > 1 else ""
        ops, cur, depth = [], "", 0
        for ch in rest:
            if ch in "[(": depth += 1
            if ch in "])": depth -= 1
            if ch == "," and depth == 0:
                ops.append(cur.strip()); cur = ""
            else: cur += ch
        if cur.strip(): ops.append(cur.strip())
        mods = ""
        if ops:
            last = ops[-1].split(None, 1)
            ops[-1] = last[0]
            if len(last) > 1: mods = last[1]
        self.ops, self.mods = ops, mods
        self.modset = set(mods.split())
        R = [regs_of(o) for o in ops]
        self.reads, self.writes = set(), set()
        self.kind = "other"
        self.trans = False; self.dpp = False; self.mfma = False; self.dot = False
        self.srcC = set(); self.srcAB = set(); self.store_data = set()
        self.lds_dma = False; self.cnt = None
        base = re.sub(r"_(e32|e64|dpp|sdwa)$", "", op)
        self.base = base
        def rd(idx):
            for i in idx:
                if i < len(R): self.reads |= R[i]
        def wr(idx):
            for i in idx:
                if i < len(R): self.writes |= R[i]
        n = len(ops)
        if op.startswith("v_mfma") or op.startswith("v_smfmac"):
            self.kind = "valu"; self.mfma = True; self.passes = mfma_passes(op)
            wr([0]); rd([1, 2, 3]); self.srcC = R[3]; self.srcAB = R[1] | R[2]
            self.sgemm = op.endswith("_f32") and ("x2_f32" in op or "x4_f32" in op)
        elif op.startswith("v_"):
            self.kind = "valu"
            self.trans = base in TRANS
            self.dpp = op.endswith("_dpp") or "row_" in mods or "quad_perm" in mods or "wave_" in mods
            self.dot = base.startswith("v_dot")
            if base.startswith("v_cmpx"):
                wr([0]); rd(range(1, n)); self.writes |= EXECSET
            elif base.startswith("v_cmp"):
                wr([0]); rd(range(1, n))
            elif re.match(r"v_(add|sub|subrev)_co_u32", base) or base.startswith("v_div_scale") or base.startswith("v_mad_u64_u32"):
                wr([0, 1]); rd(range(2, n))
            elif re.match(r"v_(addc|subb|subbrev)_co_u32", base):
                wr([0, 1]); rd(range(2, n))
            elif "swap" in base:
                wr([0, 1]); rd([0, 1])
            elif base == "v_nop":
                pass
            else:
                wr([0]); rd(range(1, n))
                if base.startswith(("v_fmac", "v_dot2c", "v_dot4c", "v_mac", "v_writelane", "v_pk_fmac")) or self.dpp or op.endswith("_sdwa"):
                    rd([0])
                if base.startswith("v_div_fmas"): self.reads |= VCCSET
        elif op.startswith("s_load") or op.startswith("s_buffer_load") or op in ("s_memtime", "s_memrealtime"):
            self.kind = "smem"; self.cnt = "smem"; wr([0]); rd(range(1, n))
        elif op.startswith("s_"):
            self.kind = "salu"
            if op.startswith(("s_cmp", "s_cbranch", "s_waitcnt", "s_barrier", "s_nop", "s_setprio", "s_sleep",
                              "s_endpgm", "s_branch", "s_bitcmp", "s_setreg", "s_setpc")):
                rd(range(n))
            else:
                wr([0]); rd(range(1, n))
                if "saveexec" in op: self.writes |= EXECSET; self.reads |= EXECSET
                if op.startswith(("s_addk", "s_mulk", "s_cmov")): rd([0])
        elif op.startswith("ds_"):
            self.kind = "ds"; self.cnt = "lgkm"
            if op.startswith(("ds_read", "ds_bpermute", "ds_permute", "ds_swizzle")) or "_rtn" in op:
                wr([0]); rd(range(1, n))
                if "d16" in op: rd([0])
            else:
                rd(range(n))
        elif op.startswith(("buffer_", "global_")):
            self.kind = "vmem"; self.cnt = "vm"
            if op in ("buffer_wbl2", "buffer_inv"):
                pass
            elif "lds" in self.modset or "_lds_" in op:
                self.lds_dma = True; rd(range(n)); self.reads.add(("s", "m0"))
            elif "_load" in op:
                wr([0]); rd(range(1, n))
                if "d16" in op: rd([0])
            elif "_atomic" in op:
                rd(range(n))
                if "sc0" in self.modset: wr([0])
            else:
                rd(range(n))
                if op.endswith(("x3", "x4")):
                    self.store_data = R[0] if op.startswith("buffer_") else R[1]
        else:
            raise ValueError("unknown instruction: " + text)
        self.is_branch = op.startswith(("s_cbranch", "s_branch"))
        self.target = ops[0] if self.is_branch else None
        self.uncond = op in ("s_branch", "s_endpgm")
    def states(self):
        if self.op == "s_nop": return int(self.ops[0], 0) + 1
        return 1

def vg(S): return {r for r in S if r[0] in "va"}
def sg(S): return {r for r in S if r[0] == "s"}

def hazard_need(p, c):
    need = 0
    if p.kind == "valu" and not p.mfma:
        wv = vg(p.writes); ws = sg(p.writes)
        if c.kind == "valu":
            if c.mfma and wv & vg(c.reads): need = max(need, 3 if p.dot else 2)
            if c.mfma and (ws & EXECSET): need = max(need, 4)
            if c.dpp and wv & vg(c.reads): need = max(need, 2)
            if c.dpp and (ws & EXECSET): need = max(need, 5)
            if "permlane" in c.base and wv & vg(c.reads): need = max(need, 2)
            if c.base in ("v_readlane_b32", "v_readfirstlane_b32") and wv & vg(c.reads): need = max(need, 1)
            if p.trans and wv & (vg(c.reads) | vg(c.writes)): need = max(need, 1)
            if ws & sg(c.reads):
                need = max(need, 4 if c.base in ("v_readlane_b32", "v_writelane_b32", "v_div_fmas_f32") else 2)
            if p.dot:
                if c.dot and c.base == p.base:
                    ab = set()
                    for o in c.ops[1:3]: ab |= regs_of(o)
                    if wv & ab: need = max(need, 3)
                elif wv & (vg(c.reads) | vg(c.writes)): need = max(need, 3)
            if (p.op.endswith("_sdwa") and "dst_sel:DWORD" not in p.mods) and wv & (vg(c.reads) | vg(c.writes)):
                need = max(need, 1)
        else:
            if c.kind == "vmem" and ws & sg(c.reads): need = max(need, 5)
            if p.dot and c.kind in ("vmem", "ds") and wv & vg(c.reads): need = max(need, 3)
            if p.trans and c.kind in ("vmem", "ds") and wv & vg(c.reads): need = max(need, 1)
    if p.mfma:
        D = vg(p.writes); P = p.passes
        if p.sgemm:
            tabAB = {2: 4, 4: 6, 8: 10, 16: 18}[P]; tabOv = {2: 2, 4: 4, 8: 8, 16: 16}[P]
        else:
            tabAB = {2: 5, 4: 8, 8: 12, 16: 20}[P]; tabOv = {2: 4, 4: 6, 8: 10, 16: 18}[P]
        if c.mfma:
            if D & c.srcAB: need = max(need, tabAB)
            if D & c.srcC:
                if D == c.srcC and c.passes == P and c.sgemm == p.sgemm: need = max(need, 2 if P == 2 else 0)
                else: need = max(need, tabOv)
            elif D & vg(c.writes): need = max(need, tabOv)
        elif c.kind in ("valu", "vmem", "ds"):
            if D & (vg(c.reads) | vg(c.writes)): need = max(need, tabAB)
            if c.kind == "valu" and not p.sgemm and p.srcC & vg(c.writes):
                need = max(need, {2: 1, 4: 3, 8: 7, 16: 15}[P])
    if p.kind == "salu" and ("s", "m0") in p.writes and (c.lds_dma or "addtid" in c.op): need = max(need, 1)
    if p.store_data and p.store_data & vg(c.writes): need = max(need, 2 if c.kind == "valu" else 1)
    return need

class Kernel:
    def __init__(self, name):
        self.name = name; self.items = []; self._lab = 0
    def __call__(self, text):
        for line in text.split("\n"):
            line = line.strip()
            if not line or line.startswith(";"): continue
            if line.endswith(":"): self.items.append(line[:-1])
            else: self.items.append(Ins(line))
    def label(self, p="L"):
        self._lab += 1
        return f"{self.name}_{p}{self._lab}"
    def _succ(self, items):
        pos = {it: i for i, it in enumerate(items) if isinstance(it, str)}
        succ = []
        for i, it in enumerate(items):
            sc = []
            if isinstance(it, str): sc = [i + 1]
            else:
                if it.is_branch and it.target in pos: sc.append(pos[it.target])
                if not it.uncond: sc.append(i + 1)
            succ.append([x for x in sc if x < len(items)])
        return succ
    def auto_wait(self):
        items = self.items; succ = self._succ(items); n = len(items)
        instate = [None] * n
        waits = [None] * n
        entries = [0] + [i for i, it in enumerate(items) if isinstance(it, str) and it.endswith("_kernel")]
        work = []
        for e in entries:
            instate[e] = ({}, {}, False); work.append(e)
        def merge(a, b):
            if a is None: return b, True
            ch = False; out = []
            for da, db in zip(a[:2], b[:2]):
                d = dict(da)
                for r, age in db.items():
                    if r not in d or age < d[r]: d[r] = age; ch = True
                out.append(d)
            fl = a[2] or b[2]
            if fl != a[2]: ch = True
            return (out[0], out[1], fl), ch
        def apply_wait(st, vmN, lgN):
            vm, lg, fl = st
            if vmN is not None: vm = {r: g for r, g in vm.items() if g < vmN}
            if lgN is not None:
                if lgN == 0: lg = {}; fl = False
                elif not fl: lg = {r: g for r, g in lg.items() if g < lgN}
            return (vm, lg, fl)
        cnt = 0
        while work:
            i = work.pop(); cnt += 1
            assert cnt < 5_000_000
            st = instate[i]; it = items[i]
            if not isinstance(it, str):
                if it.op == "s_waitcnt":
                    t = it.text.split(";")[0]
                    m1 = re.search(r"vmcnt\((\d+)\)", t); m2 = re.search(r"lgkmcnt\((\d+)\)", t)
                    st = apply_wait(st, int(m1.group(1)) if m1 else None, int(m2.group(1)) if m2 else None)
                else:
                    touched = it.reads | it.writes
                    vmN = min([g for r, g in st[0].items() if r in touched], default=None)
                    lgN = min([g for r, g in st[1].items() if r in touched], default=None)
                    if vmN is not None: vmN = min(vmN, 63)
                    if lgN is not None: lgN = 0 if st[2] else min(lgN, 15)
                    old = waits[i] or (None, None)
                    def mn(x, y): return y if x is None else (x if y is None else min(x, y))
                    vmN, lgN = mn(old[0], vmN), mn(old[1], lgN)
                    waits[i] = (vmN, lgN)
                    st = apply_wait(st, vmN, lgN)
                    vm, lg, fl = st
                    if it.cnt == "vm":
                        vm = {r: g + 1 for r, g in vm.items()}
                        for r in it.writes: vm[r] = 0
                    elif it.cnt == "lgkm":
                        lg = {r: g + 1 for r, g in lg.items()}
                        for r in it.writes: lg[r] = 0
                    elif it.cnt == "smem":
                        lg = {r: g + 1 for r, g in lg.items()}
                        for r in it.writes: lg[r] = 0
                        fl = True
                    st = (vm, lg, fl)
            for j in succ[i]:
                ns, ch = merge(instate[j], st)
                if ch:
                    instate[j] = ns; work.append(j)
        out = []
        for i, it in enumerate(items):
            w = waits[i]
            if w and (w[0] is not None or w[1] is not None):
                t = "s_waitcnt"
                if w[0] is not None: t += f" vmcnt({w[0]})"
                if w[1] is not None: t += f" lgkmcnt({w[1]})"
                out.append(Ins(t))
            out.append(it)
        self.items = out
    def auto_nop(self):
        changed = True
        while changed:
            changed = False
            items = self.items; succ = self._succ(items); n = len(items)
            pred = [[] for _ in range(n)]
            for i, sc in enumerate(succ):
                for j in sc: pred[j].append(i)
            add = {}
            for i, c in enumerate(items):
                if isinstance(c, str) or c.kind in ("salu", "smem"): continue
                need = 0
                stack = [(j, 0) for j in pred[i]]; seen = {}
                while stack:
                    j, dist = stack.pop()
                    if dist >= 20: continue
                    if j in seen and seen[j] <= dist: continue
                    seen[j] = dist
                    p = items[j]
                    if isinstance(p, str): d2 = dist
                    else:
                        h = hazard_need(p, c)
                        if h > dist: need = max(need, h - dist)
                        d2 = dist + p.states() + add.get(j, 0)
                    for k in pred[j]: stack.append((k, d2))
                if need > 0: add[i] = need
            if add:
                changed = True
                out = []
                for i, it in enumerate(items):
                    k = add.get(i, 0)
                    while k > 0:
                        m = min(k, 16); out.append(Ins(f"s_nop {m-1}")); k -= m
                    out.append(it)
                self.items = out
    def finish(self):
        self.auto_wait(); self.auto_nop()
    def maxreg(self, kind):
        m = -1
        for it in self.items:
            if isinstance(it, str): continue
            for r in it.reads | it.writes:
                if r[0] == kind and isinstance(r[1], int): m = max(m, r[1])
        return m
    def text(self):
        out = []
        for it in self.items:
            if isinstance(it, str):
                if it.endswith("_kernel"):
                    out.append(f".globl {it}\n.p2align 8\n.type {it},@function")
                out.append(it + ":")
            else: out.append("    " + it.text)
        return "\n".join(out) + "\n"

def descriptor(name, nv, na, ns, extra=""):
    acc = max(4, (nv + 3) // 4 * 4)
    tot = acc + na if na > 0 else nv
    return f""".p2align 6
.amdhsa_kernel {name}
  .amdhsa_next_free_vgpr {tot}
  .amdhsa_next_free_sgpr {ns}
  .amdhsa_accum_offset {acc}
  .amdhsa_group_segment_fixed_size 0
  .amdhsa_kernarg_size 112
  .amdhsa_user_sgpr_count 2
  .amdhsa_user_sgpr_kernarg_segment_ptr 1
  .amdhsa_system_sgpr_workgroup_id_x 1
  .amdhsa_float_denorm_mode_32 3
  .amdhsa_float_denorm_mode_16_64 3
{extra}.end_amdhsa_kernel
"""

def build_file(header_comments, launches, kernels):
    out = header_comments
    for (lab, g, b, lds) in launches:
        out += f"; @launch kernel={lab} grid=({g},1,1) block=({b},1,1) lds={lds}\n"
    out += '.amdgcn_target "amdgcn-amd-amdhsa--gfx950"\n.text\n'
    for k, ents in kernels: out += k.text()
    out += '.section .rodata,"a"\n'
    for k, ents in kernels:
        for e in ents:
            out += descriptor(e, k.maxreg("v") + 1, k.maxreg("a") + 1, max(k.maxreg("s") + 1, 8))
    return out
```

```python
from asmlib import *
from layout import *
import struct
def f32(x): return "0x%08x" % struct.unpack("<I", struct.pack("<f", x))[0]
def srd(k, d, p, nbytes):
    k(f"s_mov_b32 s{d}, s{p}\ns_mov_b32 s{d+1}, s{p+1}\ns_mov_b32 s{d+2}, {nbytes}\ns_mov_b32 s{d+3}, 0x20000")
def srd_inplace(k, d, nbytes):
    k(f"s_mov_b32 s{d+2}, {nbytes}\ns_mov_b32 s{d+3}, 0x20000")
def row16_sum(k, r):
    for sh in (8, 4, 2, 1):
        k(f"v_add_f32_dpp v{r}, v{r}, v{r} row_ror:{sh} row_mask:0xf bank_mask:0xf")
```

```python
from common import *
L_KI = 0
UQ = 82 * 16
U4 = 24576
UC = 4 * UQ
WP_ = 4224
WIN = U4 + 2 * UC + 128
WC = 5 * WP_
YB = WIN + 2 * WC
YS = 8 * 68 * 16
CONV_LDS = YB + 4 * YS

def build():
    k = Kernel("cv")
    k("conv2_kernel:")
    k(f"s_mov_b32 s43, 1\ns_mov_b32 s41, {XB3}\ns_mov_b32 s42, {ST3}\ns_branch cv_start")
    k("conv1_kernel:")
    k(f"s_mov_b32 s43, 0\ns_mov_b32 s41, {XB1}\ns_mov_b32 s42, {ST1}")
    k("cv_start:")
    k("s_cmp_ge_u32 s2, 256\ns_cbranch_scc1 cv_end")
    k(f"s_load_dwordx2 s[8:9], s[0:1], {A_U}\ns_load_dwordx2 s[12:13], s[0:1], {A_DSKIP}\ns_load_dwordx2 s[28:29], s[0:1], {D_WS}")
    k("s_and_b32 s3, s2, 7\ns_lshl_b32 s3, s3, 5\ns_lshr_b32 s4, s2, 3\ns_add_u32 s33, s3, s4")
    k("v_lshrrev_b32 v1, 6, v0\nv_and_b32 v2, 63, v0\nv_readfirstlane_b32 s34, v1")
    k("v_mov_b32 v4, 0\nv_mov_b32 v5, 0\nv_mov_b32 v6, 0\nv_mov_b32 v7, 0")
    k(f"v_and_b32 v8, 7, v0\nv_mul_u32_u24 v8, {UQ}, v8\nv_lshrrev_b32 v9, 3, v0\nv_lshl_add_u32 v8, v9, 4, v8")
    k(f"v_cmp_gt_u32 vcc, 144, v0\ns_and_saveexec_b64 s[6:7], vcc\nds_write_b128 v8, v[4:7] offset:{U4}\ns_mov_b64 exec, s[6:7]")
    k("v_lshlrev_b32 v3, 4, v0")
    k("v_lshlrev_b32 v10, 15, v9\nv_and_b32 v11, 7, v0\nv_lshl_add_u32 v10, v11, 3, v10")
    k("s_waitcnt lgkmcnt(0)")
    srd_inplace(k, 8, 2097152); srd_inplace(k, 28, WS_USED)
    k("s_lshl_b32 s35, s33, 2\ns_add_u32 s12, s12, s35\ns_addc_u32 s13, s13, 0\ns_load_dword s36, s[12:13], 0")
    k("s_lshl_b32 s37, s33, 7\ns_add_u32 s41, s41, s37")
    k("buffer_load_dwordx4 v[16:19], v3, s[28:31], s42 offen\ns_add_u32 s42, s42, 8192\nbuffer_load_dwordx4 v[20:23], v3, s[28:31], s42 offen")
    L2 = k.label("l2"); Lj = k.label("j")
    k(f"s_cmp_eq_u32 s43, 1\ns_cbranch_scc1 {L2}")
    k("v_lshlrev_b32 v12, 12, v0")
    for i in range(4): k(f"buffer_load_dword v{24+i}, v12, s[8:11], s35 offen offset:{1024*i}")
    def kdma():
        k(f"s_mul_i32 s38, s33, {2*KI_CH}\ns_mul_i32 s39, s34, 3072\ns_add_u32 s38, s38, s39\ns_add_u32 s38, s38, {KI}")
        k(f"s_add_u32 m0, s39, {L_KI}\nv_lshlrev_b32 v13, 4, v2")
        for i in range(3): k(f"buffer_load_dwordx4 v13, s[28:31], s38 offen offset:{1024*i} lds")
    kdma()
    for i in range(4): k(f"v_lshlrev_b32 v{28+i}, 16, v{24+i}\nv_and_b32 v{32+i}, 0xffff0000, v{24+i}")
    k(f"s_branch {Lj}\n{L2}:")
    k(f"s_add_u32 s40, s37, {XB2}")
    k("buffer_load_dwordx2 v[24:25], v10, s[28:31], s40 offen\nbuffer_load_dwordx2 v[26:27], v10, s[28:31], s40 offen offset:64")
    kdma()
    for c in range(2):
        for i in range(2): k(f"v_lshlrev_b32 v{28+4*c+2*i}, 16, v{24+2*c+i}\nv_and_b32 v{29+4*c+2*i}, 0xffff0000, v{24+2*c+i}")
    k(f"{Lj}:")
    k(f"s_mov_b32 s4, {f32(1/512)}\nv_mov_b32 v14, {f32(1e-5)}")
    for i in range(4):
        k(f"v_mul_f32 v{16+i}, s4, v{16+i}\nv_fma_f32 v{20+i}, s4, v{20+i}, v14")
    for i in range(4): k(f"v_fma_f32 v{20+i}, -v{16+i}, v{16+i}, v{20+i}")
    for i in range(4): k(f"v_max_f32 v{20+i}, v{20+i}, v14")
    for i in range(4): k(f"v_rsq_f32 v{20+i}, v{20+i}")
    k("s_lshl_b32 s4, s36, 16\ns_and_b32 s5, s36, 0xffff0000")
    for c in range(2):
        for i in range(4): k(f"v_sub_f32 v{36+4*c+i}, v{28+4*c+i}, v{16+i}")
        for i in range(4): k(f"v_mul_f32 v{36+4*c+i}, v{36+4*c+i}, v{20+i}")
    for c in range(2):
        k(f"v_cvt_pk_bf16_f32 v{44+2*c}, v{36+4*c}, v{37+4*c}\nv_cvt_pk_bf16_f32 v{45+2*c}, v{38+4*c}, v{39+4*c}")
    k(f"v_bfe_u32 v12, v0, 1, 2\nv_mul_u32_u24 v12, {UQ}, v12\nv_lshl_add_u32 v12, v9, 4, v12\nv_and_b32 v13, 1, v0\nv_lshl_add_u32 v12, v13, 3, v12")
    k(f"ds_write_b64 v12, v[44:45] offset:{U4+18*16}\nds_write_b64 v12, v[46:47] offset:{U4+UC+18*16}")
    for c in range(2):
        for i in range(4): k(f"v_fma_f32 v{28+4*c+i}, v{36+4*c+i}, s{4+c}, v{28+4*c+i}")
    k("s_waitcnt vmcnt(0) lgkmcnt(0)\ns_barrier")
    Lh = k.label("help"); Le = k.label("epi")
    k(f"s_cmp_ge_u32 s34, 4\ns_cbranch_scc1 {Lh}")
    mfma_part(k)
    k(f"s_branch {Le}\n{Lh}:")
    windows(k)
    k("s_waitcnt lgkmcnt(0)\ns_barrier")
    k(f"{Le}:")
    k("s_waitcnt lgkmcnt(0)\ns_barrier")
    k(f"v_mul_u32_u24 v12, {68*16}, v11\nv_lshl_add_u32 v12, v9, 4, v12\nv_add_u32 v12, {YB}, v12")
    for i in range(4): k(f"ds_read_b128 {v(48+4*i,4)}, v12 offset:{i*YS}")
    k(f"v_lshlrev_b32 v13, 3, v0\nv_subrev_u32 v13, {2048-64}, v13\nv_max_i32 v13, 0, v13\nv_add_u32 v13, {WIN+4*WP_}, v13")
    k(f"ds_read_b64 v[64:65], v13\nds_read_b64 v[66:67], v13 offset:{WC}")
    k(f"v_mov_b32 v14, {L_KI+KI_K1024}\nds_read_b32 v68, v14\nds_read_b32 v69, v14 offset:{KI_CH}")
    for c in range(2):
        for i in range(4): k(f"v_add_f32 v{28+4*c+i}, v{28+4*c+i}, v{48+8*c+i}")
        for i in range(4): k(f"v_add_f32 v{28+4*c+i}, v{28+4*c+i}, v{52+8*c+i}")
    for c in range(2):
        for i in range(2):
            k(f"v_lshlrev_b32 v70, 16, v{64+2*c+i}\nv_and_b32 v71, 0xffff0000, v{64+2*c+i}")
            k(f"v_fmac_f32 v{28+4*c+2*i}, v70, v{68+c}\nv_fmac_f32 v{29+4*c+2*i}, v71, v{68+c}")
    for c in range(2):
        k(f"v_cvt_pk_bf16_f32 v{44+2*c}, v{28+4*c}, v{29+4*c}\nv_cvt_pk_bf16_f32 v{45+2*c}, v{30+4*c}, v{31+4*c}")
    k("buffer_store_dwordx2 v[44:45], v10, s[28:31], s41 offen\nbuffer_store_dwordx2 v[46:47], v10, s[28:31], s41 offen offset:64")
    k("cv_end:\ns_endpgm")
    k.finish()
    return k

def windows(k):
    for i, d in enumerate((-1, 0, 1)):
        k(f"v_add_u32 v48, {72-4-256+d}, v0\nv_and_b32 v49, 3, v48\nv_mul_u32_u24 v49, {UQ}, v49\nv_lshrrev_b32 v48, 2, v48\nv_lshl_add_u32 v{50+i}, v48, 4, v49")
    for c in range(2):
        b = 56 + 8 * c
        k(f"ds_read_b64 {v(b,2)}, v50 offset:{U4+c*UC+8}\nds_read_b128 {v(b+2,4)}, v51 offset:{U4+c*UC}\nds_read_b64 {v(b+6,2)}, v52 offset:{U4+c*UC}")
    k(f"v_lshlrev_b32 v53, 4, v0\nv_add_u32 v53, {WIN-4096}, v53")
    for c in range(2):
        b = 56 + 8 * c
        for i in range(8): k(f"v_lshlrev_b32 v{72+2*i}, 16, v{b+i}\nv_and_b32 v{73+2*i}, 0xffff0000, v{b+i}")
        for i in range(1, 16): k(f"v_add_f32 v{72+i}, v{72+i}, v{71+i}")
        for ai, (lo, hi) in enumerate(((-2, 2), (-1, 1), (-4, 4), (-3, 3), (-4, 2))):
            t = 88 + 8 * (ai % 2); o = 104 + 4 * (ai % 2)
            for i in range(8):
                h_ = i + 4 + hi; l_ = i + 4 + lo - 1
                if l_ < 0: k(f"v_mov_b32 v{t+i}, v{72+h_}")
                else: k(f"v_sub_f32 v{t+i}, v{72+h_}, v{72+l_}")
            for i in range(4): k(f"v_cvt_pk_bf16_f32 v{o+i}, v{t+2*i}, v{t+2*i+1}")
            k(f"ds_write_b128 v53, {v(o,4)} offset:{c*WC+ai*WP_}")

def mfma_part(k):
    k("v_and_b32 v48, 31, v0\nv_bfe_u32 v49, v0, 5, 1\ns_lshr_b32 s4, s34, 1\ns_and_b32 s5, s34, 1")
    k("v_lshlrev_b32 v50, 3, v49\nv_sub_u32 v50, v50, v48\nv_lshlrev_b32 v50, 4, v50")
    k(f"s_mul_i32 s6, s4, {KI_CH}\ns_lshl_b32 s7, s5, 8\ns_add_u32 s7, s7, s6\ns_add_u32 s7, s7, {L_KI+16*31}\nv_add_u32 v50, s7, v50")
    k(f"v_mul_u32_u24 v51, {UQ}, v49\nv_lshl_add_u32 v51, v48, 4, v51")
    k(f"s_mul_i32 s7, s4, {UC}\ns_mul_i32 s38, s5, {2*UQ}\ns_add_u32 s7, s7, s38\ns_add_u32 s7, s7, {U4+16}\nv_add_u32 v51, s7, v51")
    k("v_bfe_u32 v52, v0, 2, 2\nv_and_b32 v53, 3, v0\nv_bfe_u32 v54, v0, 4, 1")
    k("v_lshlrev_b32 v55, 3, v53\nv_lshl_add_u32 v55, v54, 5, v55")
    k(f"v_and_b32 v56, 1, v52\nv_mul_u32_u24 v56, {WP_}, v56\nv_add_u32 v55, v55, v56")
    k("v_lshl_add_u32 v56, v49, 3, v52")
    k(f"s_mul_i32 s7, s4, {WC}\ns_add_u32 s7, s7, {WIN}")
    k("s_lshl_b32 s38, s5, 7\ns_add_u32 s38, s38, s7\nv_lshl_add_u32 v57, v56, 3, v55\nv_add_u32 v57, s38, v57")
    k(f"s_lshl_b32 s38, s5, 8\ns_add_u32 s38, s38, s7\ns_add_u32 s38, s38, {2*WP_}\nv_lshl_add_u32 v58, v56, 4, v55\nv_add_u32 v58, s38, v58")
    k("v_sub_u32 v59, v49, v48\nv_lshlrev_b32 v59, 4, v59")
    k(f"s_lshl_b32 s38, s5, 5\ns_add_u32 s38, s38, s6\ns_add_u32 s39, s38, {L_KI+KI_MID+496}\nv_add_u32 v59, s39, v59")
    k("v_lshlrev_b32 v60, 1, v49\nv_sub_u32 v60, v60, v48\nv_lshlrev_b32 v60, 3, v60")
    k(f"s_add_u32 s39, s38, {L_KI+KI_FAR+248}\nv_add_u32 v60, s39, v60")
    A0, A1 = 64, 80
    NB = 3; FB = 96
    def rd_near(m):
        b = FB + 12 * (m % NB)
        k(f"ds_read_b128 {v(b,4)}, v50 offset:{(17-m)*512}")
        k(f"ds_read_b128 {v(b+4,4)}, v51 offset:{(17-m)*16}\nds_read_b128 {v(b+8,4)}, v51 offset:{(17-m)*16+512}")
    for m in range(NB): rd_near(m)
    for m in range(18):
        b = FB + 12 * (m % NB)
        k(f"v_mfma_f32_32x32x16_bf16 {v(A0,16)}, {v(b,4)}, {v(b+4,4)}, {'0' if m==0 else v(A0,16)}")
        k(f"v_mfma_f32_32x32x16_bf16 {v(A1,16)}, {v(b,4)}, {v(b+8,4)}, {'0' if m==0 else v(A1,16)}")
        if m + NB < 18: rd_near(m + NB)
    k("s_barrier")
    steps = [("m", i) for i in range(12)] + [("f", i) for i in range(4)]
    NB2 = 4
    def rd2(n):
        t, i = steps[n]; b = FB + 12 * (n % NB2)
        if t == "m":
            k(f"ds_read_b64_tr_b16 {v(b,2)}, v57 offset:{256*i}\nds_read_b64_tr_b16 {v(b+2,2)}, v57 offset:{256*i+32}")
            k(f"ds_read_b128 {v(b+4,4)}, v59 offset:{64*i}")
            if i < 4: k(f"ds_read_b128 {v(b+8,4)}, v59 offset:{64*i+512}")
        else:
            k(f"ds_read_b64_tr_b16 {v(b,2)}, v58 offset:{512*i}\nds_read_b64_tr_b16 {v(b+2,2)}, v58 offset:{512*i+64}")
            k(f"ds_read_b64 {v(b+4,2)}, v60 offset:{64*i}\nds_read_b64 {v(b+6,2)}, v60 offset:{64*i+8}")
    for n in range(NB2): rd2(n)
    for n, (t, i) in enumerate(steps):
        b = FB + 12 * (n % NB2)
        k(f"v_mfma_f32_32x32x16_bf16 {v(A1,16)}, {v(b,4)}, {v(b+4,4)}, {v(A1,16)}")
        if t == "m" and i < 4: k(f"v_mfma_f32_32x32x16_bf16 {v(A0,16)}, {v(b,4)}, {v(b+8,4)}, {v(A0,16)}")
        if n + NB2 < len(steps): rd2(n + NB2)
    k(f"v_mul_u32_u24 v61, {68*16}, v49\nv_lshl_add_u32 v61, v48, 4, v61\ns_mul_i32 s7, s34, {YS}\ns_add_u32 s7, s7, {YB}\nv_add_u32 v61, s7, v61")
    for g, A in ((0, A0), (1, A1)):
        for q in range(4): k(f"ds_write_b128 v61, {v(A+4*q,4)} offset:{q*2*68*16+g*512}")
```

```python
from common import *
TP = 528
TA = 0; TB = 2 * 32 * TP
RC = 4 * 32 * TP
MF = RC + 2 * 1280
K0_LDS = MF + 2 * 1824 + 4096

def ceval(k, dst, er, ei, P, t):
    if P == 1:
        k(f"v_exp_f32 v{t}, v{er}\nv_fract_f32 v{t+1}, v{ei}")
    else:
        k(f"v_mul_f32 v{t}, {f32(P)}, v{er}\nv_mul_f32 v{t+1}, {f32(P)}, v{ei}")
        k(f"v_exp_f32 v{t}, v{t}\nv_fract_f32 v{t+1}, v{t+1}")
    k(f"v_cos_f32 v{dst}, v{t+1}\nv_sin_f32 v{dst+1}, v{t+1}")
    k(f"v_mul_f32 v{dst}, v{dst}, v{t}\nv_mul_f32 v{dst+1}, v{dst+1}, v{t}")
def cmul(k, d, a_, w, wn, t):
    k(f"v_pk_mul_f32 {v(t,2)}, {v(a_,2)}, {v(w,2)} op_sel:[0,0] op_sel_hi:[0,1]")
    k(f"v_pk_fma_f32 {v(d,2)}, {v(a_,2)}, {v(wn,2)}, {v(t,2)} op_sel:[1,0,0] op_sel_hi:[1,1,1]")
def neg_rot(k, wn, w):
    k(f"v_sub_f32 v{wn}, 0, v{w+1}\nv_mov_b32 v{wn+1}, v{w}")

def kgen_loads(k, P):
    k("v_and_b32 v9, 255, v0\nv_lshlrev_b32 v9, 1, v9")
    k(f"s_lshl_b32 s3, s2, 9")
    for i, r in enumerate(P["srds"]):
        k(f"buffer_load_ushort v{10+i}, v9, {s(r,4)}, s3 offen")

def kgen_tables(k, wv, sdt):
    k(f"s_lshl_b32 s4, s{sdt}, 16\ns_and_b32 s5, s{sdt}, 0xffff0000")
    k(f"s_bitcmp1_b32 s{wv}, 1\ns_cselect_b32 s4, s5, s4")
    k(f"v_mov_b32 v14, {LOG2E}\nv_mul_f32 v15, s4, v14\nv_exp_f32 v15, v15")
    k("v_lshlrev_b32 v10, 16, v10\nv_mul_f32 v10, v10, v14\nv_exp_f32 v10, v10")
    k("v_cvt_pk_bf16_f32 v15, v15, v10")
    k("v_and_b32 v10, 0xffff0000, v15\nv_lshlrev_b32 v15, 16, v15")
    k("v_lshlrev_b32 v11, 16, v11")
    k("v_mul_f32 v10, v10, v15\nv_mul_f32 v11, v11, v15")
    k(f"v_mul_f32 v10, {f32(-1.4426950408889634)}, v10\nv_mul_f32 v11, 0.15915494, v11")
    k(f"v_and_b32 v16, 127, v0\nv_lshlrev_b32 v16, 2, v16\nv_bfe_u32 v17, v0, 7, 1")
    k(f"v_mul_u32_u24 v17, {32*TP}, v17\nv_add_u32 v16, v16, v17")
    Lr = k.label("role1"); Ld = k.label("tabdone")
    k(f"s_cmp_ge_u32 s{wv}, 4\ns_cbranch_scc1 {Lr}")
    ceval(k, 20, 10, 11, 8, 18); neg_rot(k, 22, 20)
    k(f"v_mov_b32 v28, 0x3f80\nds_write_b32 v16, v28 offset:{TB}")
    k(f"v_cvt_pk_bf16_f32 v29, v20, v21\nds_write_b32 v16, v29 offset:{TB+TP}")
    cur = 20
    for i in range(2, 32):
        d = 24 if i % 2 == 0 else 26
        cmul(k, d, cur, 20, 22, 18); cur = d
        o = 28 + (i % 2)
        k(f"v_cvt_pk_bf16_f32 v{o}, v{d}, v{d+1}\nds_write_b32 v16, v{o} offset:{TB+i*TP}")
    k(f"s_branch {Ld}\n{Lr}:")
    ceval(k, 20, 10, 11, 1, 18); neg_rot(k, 22, 20)
    ceval(k, 24, 10, 11, 256, 18); neg_rot(k, 26, 24)
    k("v_add_f32 v15, v15, v15\nv_lshlrev_b32 v12, 16, v12\nv_lshlrev_b32 v13, 16, v13")
    k("v_mul_f32 v30, v12, v15\nv_mul_f32 v31, v13, v15")
    cnt = [0]
    def put(r, rows):
        o = 28 + (cnt[0] % 2); cnt[0] += 1
        k(f"v_cvt_pk_bf16_f32 v{o}, v{r}, -v{r+1}")
        for row in rows: k(f"ds_write_b32 v16, v{o} offset:{TA+row*TP}")
    put(30, [0])
    for i in range(1, 9):
        cmul(k, 30 + 2 * i, 28 + 2 * i, 20, 22, 18)
        if i < 8: put(30 + 2 * i, [i])
    g = lambda i: 30 + 2 * i
    for i, rows in ((0, [8]), (2, [9]), (4, [10, 12]), (6, [13]), (8, [14])):
        cmul(k, g(i) , g(i), 24, 26, 18); put(g(i), rows)
    for i, rows in ((4, [16]), (8, [17]), (4, [20]), (8, [21]), (8, [18]), (8, [19]), (8, [22]), (8, [23])):
        cmul(k, g(i), g(i), 24, 26, 18); put(g(i), rows)
    k(f"{Ld}:")

def kgen_mfma_scatter(k, wv, rc_base, mf_base, mf_stride):
    Ls = k.label("skipm")
    k(f"s_cmp_ge_u32 s{wv}, 2\ns_cbranch_scc1 {Ls}")
    k(f"v_and_b32 v16, 31, v0\nv_bfe_u32 v17, v0, 5, 1")
    k(f"v_mul_u32_u24 v18, {TP}, v16\nv_lshl_add_u32 v18, v17, 4, v18")
    k(f"s_mul_i32 s4, s{wv}, {32*TP}\nv_add_u32 v18, s4, v18")
    NB = 4
    def rd(ks):
        b = 40 + 8 * (ks % NB)
        k(f"ds_read_b128 {v(b,4)}, v18 offset:{TA+ks*32}\nds_read_b128 {v(b+4,4)}, v18 offset:{TB+ks*32}")
    for ks in range(NB): rd(ks)
    for ks in range(16):
        b = 40 + 8 * (ks % NB)
        k(f"v_mfma_f32_32x32x16_bf16 v[20:35], {v(b,4)}, {v(b+4,4)}, {'0' if ks==0 else 'v[20:35]'}")
        if ks + NB < 16: rd(ks + NB)
    k("v_lshlrev_b32 v19, 3, v16\nv_lshl_add_u32 v19, v17, 2, v19")
    k(f"s_mul_i32 s4, s{wv}, 1280\ns_add_u32 s4, s4, {rc_base + 2*(572-256)}")
    k("v_lshlrev_b32 v36, 1, v19\nv_sub_u32 v36, s4, v36")
    k("v_cvt_pk_bf16_f32 v38, v23, v22\nv_cvt_pk_bf16_f32 v39, v21, v20\nds_write_b64 v36, v[38:39] offset:512")
    k("v_cvt_pk_bf16_f32 v40, v26, v25\nv_cvt_pk_bf16_f32 v41, v24, v24\nds_write_b64 v36, v[40:41]")
    k(f"s_mul_i32 s5, s{wv}, {mf_stride}\ns_add_u32 s5, s5, {mf_base}")
    k("v_and_b32 v37, 63, v0\nv_cmp_eq_u32 vcc, 63, v37")
    k("v_cndmask_b32 v42, v29, 0, vcc\nv_cvt_pk_bf16_f32 v42, v42, v28")
    k("v_lshlrev_b32 v43, 2, v37\nv_sub_u32 v43, s5, v43")
    k(f"ds_write_b32 v43, v42 offset:{2*382}")
    k("v_lshl_add_u32 v44, v17, 6, v16\nv_lshlrev_b32 v44, 1, v44\nv_sub_u32 v44, s5, v44")
    k("v_cvt_pk_bf16_f32 v45, v30, v31")
    k(f"ds_write_b16 v44, v45 offset:{1280+2*127}\nds_write_b16_d16_hi v44, v45 offset:{1280+2*(127-32)}")
    k("s_and_saveexec_b64 s[6:7], vcc")
    k("v_mov_b32 v46, 0\nv_cvt_pk_bf16_f32 v46, v46, v26\nv_cvt_pk_bf16_f32 v47, v26, v26")
    k(f"s_sub_u32 s4, s4, {2*(572-256)-120}\nv_mov_b32 v48, s4\nds_write_b64 v48, v[46:47]")
    k(f"v_mov_b32 v48, s5\nds_write_b32 v48, v29 offset:{1280+512}")
    k("s_mov_b64 exec, s[6:7]")
    k(f"{Ls}:")

def build():
    k = Kernel("k0")
    k("prep_kernel:")
    k("s_cmp_ge_u32 s2, 320\ns_cbranch_scc1 k0_end")
    k("s_cmp_ge_u32 s2, 256\ns_cbranch_scc1 k0_wp")
    k(f"s_load_dwordx2 s[8:9], s[0:1], {A_U}\ns_load_dwordx2 s[12:13], s[0:1], {A_LOGA}\ns_load_dwordx2 s[16:17], s[0:1], {A_AIM}")
    k(f"s_load_dwordx2 s[20:21], s[0:1], {A_CR}\ns_load_dwordx2 s[24:25], s[0:1], {A_CI}\ns_load_dwordx2 s[32:33], s[0:1], {A_LOGDT}")
    k(f"s_load_dwordx2 s[28:29], s[0:1], {D_WS}")
    k("v_lshrrev_b32 v1, 6, v0\nv_and_b32 v2, 63, v0\nv_readfirstlane_b32 s34, v1")
    k(f"v_mov_b32 v4, 0\nv_mov_b32 v5, 0\nv_mov_b32 v6, 0\nv_mov_b32 v7, 0\nv_lshlrev_b32 v3, 4, v0")
    k(f"v_add_u32 v8, {RC}, v3\nv_cmp_gt_u32 vcc, 388, v0\ns_and_saveexec_b64 s[6:7], vcc\nds_write_b128 v8, v[4:7]\ns_mov_b64 exec, s[6:7]")
    k("s_waitcnt lgkmcnt(0)")
    srd_inplace(k, 8, 2097152)
    for r in (12, 16, 20, 24): srd_inplace(k, r, 131072)
    srd_inplace(k, 28, WS_USED)
    k("s_lshl_b32 s35, s2, 2\ns_add_u32 s32, s32, s35\ns_addc_u32 s33, s33, 0\ns_load_dword s36, s[32:33], 0")
    kgen_loads(k, {"srds": [12, 16, 20, 24]})
    k("s_lshl_b32 s37, s2, 13\nbuffer_load_dwordx4 v[52:55], v3, s[8:11], s37 offen")
    k(f"s_mul_i32 s38, s2, 608\ns_add_u32 s38, s38, {KV}")
    k("v_cmp_gt_u32 vcc, 38, v0\ns_and_saveexec_b64 s[6:7], vcc\nbuffer_store_dwordx4 v[4:7], v3, s[28:31], s38 offen\ns_mov_b64 exec, s[6:7]")
    kgen_tables(k, 34, 36)
    k("v_mov_b32 v56, 0\nv_mov_b32 v57, 0\nv_mov_b32 v58, 0x3f803f80")
    for i in range(4): k(f"v_dot2c_f32_bf16 v56, v{52+i}, v58\nv_dot2c_f32_bf16 v57, v{52+i}, v{52+i}")
    k("v_permlane32_swap_b32 v56, v57\nv_add_f32 v56, v56, v57")
    row16_sum(k, 56)
    k("v_mov_b32 v57, v56\nv_permlane16_swap_b32 v56, v57\nv_add_f32 v56, v56, v57")
    k(f"s_lshl_b32 s38, s2, 5\ns_lshl_b32 s39, s34, 2\ns_add_u32 s38, s38, s39\ns_add_u32 s38, s38, {ST1}")
    k("v_lshlrev_b32 v58, 8, v2\ns_mov_b64 s[6:7], exec\ns_mov_b32 exec_lo, 1\ns_mov_b32 exec_hi, 1")
    k("buffer_store_dword v56, v58, s[28:31], s38 offen\ns_mov_b64 exec, s[6:7]")
    k("s_waitcnt lgkmcnt(0)\ns_barrier")
    kgen_mfma_scatter(k, 34, RC, MF, 1824)
    k("s_waitcnt lgkmcnt(0)\ns_barrier")
    k("v_and_b32 v16, 255, v0\nv_lshrrev_b32 v17, 8, v0")
    k(f"v_lshrrev_b32 v18, 1, v16\nv_lshlrev_b32 v18, 2, v18\nv_mul_u32_u24 v19, 1280, v17\nv_add3_u32 v18, v18, v19, 0")
    k(f"v_add_u32 v18, {RC}, v18\nv_and_b32 v19, 1, v0\nv_lshlrev_b32 v19, 4, v19")
    k(f"v_mul_u32_u24 v20, {KI_CH}, v17\nv_lshl_add_u32 v20, v16, 4, v20")
    k(f"s_mul_i32 s38, s2, {2*KI_CH}\ns_add_u32 s38, s38, {KI}")
    for i in range(3):
        b = 24 + 10 * i
        k(f"ds_read2_b32 {v(b,2)}, v18 offset0:{128*i} offset1:{128*i+1}" if i < 2 else f"ds_read_b32 v{b}, v18 offset:1024\nds_read_b32 v{b+1}, v18 offset:1028")
        k(f"ds_read2_b32 {v(b+2,2)}, v18 offset0:{128*i+2} offset1:{128*i+3}" if i < 2 else f"ds_read_b32 v{b+2}, v18 offset:1032\nds_read_b32 v{b+3}, v18 offset:1036")
        k(f"ds_read_b32 v{b+4}, v18 offset:{512*i+16}")
    k(f"v_mul_u32_u24 v21, 1824, v17\nv_lshl_add_u32 v21, v16, 4, v21\nv_add_u32 v21, {MF}, v21\nds_read_b128 v[60:63], v21")
    for i in range(3):
        b = 24 + 10 * i
        for j in range(4): k(f"v_alignbit_b32 v{b+6+j}, v{b+j+1}, v{b+j}, v19")
        if i == 2: k("v_cmp_gt_u32 vcc, 88, v16\ns_and_saveexec_b64 s[6:7], vcc")
        k(f"s_add_u32 s39, s38, {4096*i}\nbuffer_store_dwordx4 {v(b+6,4)}, v20, s[28:31], s39 offen")
    k("s_mov_b64 exec, s[6:7]\nv_cmp_gt_u32 vcc, 114, v16\ns_and_saveexec_b64 s[6:7], vcc")
    k(f"s_add_u32 s39, s38, {KI_MID}\nbuffer_store_dwordx4 v[60:63], v20, s[28:31], s39 offen")
    k("s_endpgm")
    k("k0_wp:")
    wp(k)
    k("k0_end:\ns_endpgm")
    k.finish()
    return k

def wp(k):
    k(f"s_load_dwordx2 s[8:9], s[0:1], {B_WQKV}\ns_load_dwordx2 s[12:13], s[0:1], {B_WPHI}\ns_load_dwordx2 s[16:17], s[0:1], {B_WO}\ns_load_dwordx2 s[28:29], s[0:1], {D_WS}")
    k("s_sub_u32 s20, s2, 256")
    k("v_lshrrev_b32 v1, 6, v0\nv_and_b32 v2, 63, v0\nv_readfirstlane_b32 s34, v1")
    k("v_and_b32 v3, 31, v0\nv_bfe_u32 v4, v0, 5, 1")
    k("s_mul_i32 s21, s20, 43691\ns_lshr_b32 s21, s21, 17")
    k("s_mul_i32 s22, s21, 3\ns_sub_u32 s22, s20, s22")
    k("s_waitcnt lgkmcnt(0)")
    srd_inplace(k, 8, 512*1536*2); srd_inplace(k, 12, 16384); srd_inplace(k, 28, WS_USED)
    k("s_lshl_b32 s23, s22, 10\ns_lshl_b32 s24, s21, 6\ns_add_u32 s23, s23, s24\ns_movk_i32 s25, 3072")
    Lq = k.label("isq")
    k(f"s_cmp_lt_u32 s20, 48\ns_cbranch_scc1 {Lq}")
    k("s_mov_b32 s8, s16\ns_mov_b32 s9, s17\ns_mov_b32 s10, 524288\ns_sub_u32 s21, s20, 48\ns_lshl_b32 s23, s21, 6\ns_movk_i32 s25, 1024\ns_mov_b32 s22, 3")
    k(f"{Lq}:")
    k("v_lshl_add_u32 v5, v1, 6, v3\nv_mul_lo_u32 v5, v5, s25\nv_lshl_add_u32 v5, v4, 4, v5")
    k("s_lshl_b32 s26, s25, 5\ns_add_u32 s26, s26, s23")
    k("buffer_load_dwordx4 v[8:11], v5, s[8:11], s23 offen\nbuffer_load_dwordx4 v[12:15], v5, s[8:11], s23 offen offset:32")
    k("buffer_load_dwordx4 v[16:19], v5, s[8:11], s26 offen\nbuffer_load_dwordx4 v[20:23], v5, s[8:11], s26 offen offset:32")
    Lid = k.label("ident"); Lb = k.label("bdone")
    k(f"s_cmp_ge_u32 s22, 2\ns_cbranch_scc1 {Lid}")
    k("v_bfe_u32 v6, v3, 2, 1\nv_lshrrev_b32 v7, 3, v3\nv_and_b32 v28, 3, v3\nv_lshl_add_u32 v7, v7, 2, v28")
    k("v_lshlrev_b32 v7, 1, v7\nv_lshl_add_u32 v7, v4, 8, v7\nv_lshl_add_u32 v7, v6, 9, v7\ns_lshl_b32 s27, s21, 10")
    for j in range(8): k(f"buffer_load_ushort v{72+j}, v7, s[12:15], s27 offen offset:{32*j}")
    for j in range(4): k(f"v_lshl_or_b32 v{24+j}, v{73+2*j}, 16, v{72+2*j}")
    k(f"s_branch {Lb}\n{Lid}:")
    k("v_lshrrev_b32 v6, 4, v3\nv_and_b32 v7, 15, v3\nv_lshlrev_b32 v28, 3, v4\nv_sub_u32 v7, v7, v28")
    k("v_and_b32 v28, 1, v7\nv_lshlrev_b32 v28, 4, v28\nv_mov_b32 v29, 0x3f80\nv_lshlrev_b32 v29, v28, v29\nv_ashrrev_i32 v7, 1, v7")
    for j in range(4):
        k(f"v_cmp_eq_u32 vcc, {j}, v7\nv_cndmask_b32 v{24+j}, 0, v29, vcc")
    k(f"{Lb}:")
    k("v_cmp_eq_u32 vcc, 0, v6")
    for j in range(4):
        k(f"v_cndmask_b32 v{28+j}, 0, v{24+j}, vcc\nv_cndmask_b32 v{32+j}, v{24+j}, 0, vcc")
    k("v_mfma_f32_32x32x16_bf16 v[40:55], v[8:11], v[28:31], 0\nv_mfma_f32_32x32x16_bf16 v[56:71], v[16:19], v[28:31], 0")
    k("v_mfma_f32_32x32x16_bf16 v[40:55], v[12:15], v[32:35], v[40:55]\nv_mfma_f32_32x32x16_bf16 v[56:71], v[20:23], v[32:35], v[56:71]")
    Lwo = k.label("wo")
    k(f"s_cmp_eq_u32 s22, 3\ns_cbranch_scc1 {Lwo}")
    k("v_add_f32 v36, v40, v41")
    for r in range(42, 72): k(f"v_add_f32 v36, v36, v{r}")
    k("v_lshlrev_b32 v37, 2, v0\nds_write_b32 v37, v36\ns_waitcnt lgkmcnt(0)\ns_barrier")
    k("v_lshlrev_b32 v37, 2, v3")
    for j in range(8): k(f"ds_read2_b32 {v(8+2*j,2)}, v37 offset0:{64*j} offset1:{64*j+32}" if j < 4 else f"ds_read_b32 v{8+2*j}, v37 offset:{256*j}\nds_read_b32 v{9+2*j}, v37 offset:{256*j+128}")
    k("v_add_f32 v36, v8, v9")
    for r in range(10, 24): k(f"v_add_f32 v36, v36, v{r}")
    k(f"v_mul_f32 v36, {f32(1/512)}, v36")
    for r in range(40, 72): k(f"v_sub_f32 v{r}, v{r}, v36")
    for j in range(16): k(f"v_cvt_pk_bf16_f32 v{8+j}, v{40+2*j}, v{41+2*j}")
    k(f"s_mul_i32 s24, s21, 98304\ns_lshl_b32 s25, s22, 10\ns_add_u32 s24, s24, s25\ns_mul_i32 s25, s34, 12288\ns_add_u32 s24, s24, s25\ns_add_u32 s24, s24, {WQ}")
    k("v_lshlrev_b32 v37, 4, v2")
    for i in range(4):
        k(f"buffer_store_dwordx4 {v(8+4*i,4)}, v37, s[28:31], s24 offen\ns_add_u32 s24, s24, 3072")
    k("s_endpgm")
    k(f"{Lwo}:")
    for T in range(2):
        for kap in range(2):
            b = 40 + 16 * T + 4 * kap; d = 8 + 8 * T + 4 * kap
            k(f"v_cvt_pk_bf16_f32 v{d}, v{b}, v{b+1}\nv_cvt_pk_bf16_f32 v{d+1}, v{b+2}, v{b+3}")
            k(f"v_cvt_pk_bf16_f32 v{d+2}, v{b+8}, v{b+9}\nv_cvt_pk_bf16_f32 v{d+3}, v{b+10}, v{b+11}")
    k("v_bfe_u32 v36, v3, 2, 2\nv_lshlrev_b32 v36, 10, v36\nv_lshl_add_u32 v36, v4, 8, v36")
    k("v_lshrrev_b32 v37, 4, v3\nv_lshl_add_u32 v36, v37, 6, v36\nv_and_b32 v37, 3, v3\nv_lshl_add_u32 v36, v37, 4, v36")
    k(f"s_lshr_b32 s24, s21, 1\ns_lshl_b32 s24, s24, 16\ns_and_b32 s25, s21, 1\ns_lshl_b32 s25, s25, 7\ns_add_u32 s24, s24, s25")
    k(f"s_lshl_b32 s25, s34, 13\ns_add_u32 s24, s24, s25\ns_add_u32 s24, s24, {WO}")
    for T in range(2):
        for kap in range(2):
            k(f"buffer_store_dwordx4 {v(8+8*T+4*kap,4)}, v36, s[28:31], s24 offen offset:{512*kap}")
        if T == 0: k("s_add_u32 s24, s24, 4096")
```

```python
MB = 1 << 20
XB1 = 0 * MB
XB2 = 2 * MB
XB3 = 4 * MB
KI  = 6 * MB
WQ  = 12 * MB
WO  = 14 * MB
PHI = 16 * MB
KV  = 20 * MB
KVL = 0x11000
ST3 = KV + 2 * KVL
ZERO_BYTES = 2 * KVL + 16384
ST1 = 21 * MB
WS_USED = 22 * MB
A_U, A_LOGA, A_AIM, A_CR, A_CI, A_LOGDT, A_DSKIP, B_X, B_WQKV, B_WPHI, B_WO, D_OUT, D_DBG, D_WS = [8 * i for i in range(14)]
KI_NEAR = 0; KI_MID = 9600; KI_FAR = 9600 + 1280; KI_K1024 = 9600 + 1280 + 512; KI_CH = 12288
LOG2E = 0x3fb8aa3b
```

```python
from common import *
SLOT = 28672
P2_LDS = 4 * SLOT
PK = 0
VF = 16384
RB = 24576

def softmax(k, A, sc, T, O):
    mx, mn, bp, bn = T + 32, T + 33, T + 34, T + 36
    k(f"v_max3_f32 v{mx}, v{A}, v{A+1}, v{A+2}\nv_min3_f32 v{mn}, v{A}, v{A+1}, v{A+2}")
    for i in range(3, 15, 2):
        k(f"v_max3_f32 v{mx}, v{mx}, v{A+i}, v{A+i+1}\nv_min3_f32 v{mn}, v{mn}, v{A+i}, v{A+i+1}")
    k(f"v_max_f32 v{mx}, v{mx}, v{A+15}\nv_min_f32 v{mn}, v{mn}, v{A+15}")
    k(f"v_mul_f32 v{bp}, v{mx}, v{sc}\nv_mul_f32 v{bn}, v{mn}, v{sc}")
    for i in range(0, 16, 2):
        k(f"v_pk_fma_f32 {v(T+i,2)}, {v(A+i,2)}, {v(sc,2)}, {v(bp,2)} op_sel:[0,0,0] op_sel_hi:[1,0,0] neg_lo:[0,0,1] neg_hi:[0,0,1]")
    for i in range(0, 16, 2):
        k(f"v_pk_fma_f32 {v(T+16+i,2)}, {v(A+i,2)}, {v(sc,2)}, {v(bn,2)} op_sel:[0,0,0] op_sel_hi:[1,0,0] neg_lo:[1,0,0] neg_hi:[1,0,0]")
    for i in range(32): k(f"v_exp_f32 v{T+i}, v{T+i}")
    for h, acc in ((0, bp), (1, bn)):
        b = T + 16 * h
        k(f"v_pk_add_f32 {v(acc,2)}, {v(b,2)}, {v(b+2,2)}")
        for i in range(4, 16, 2): k(f"v_pk_add_f32 {v(acc,2)}, {v(acc,2)}, {v(b+i,2)}")
    k(f"v_add_f32 v{bp}, v{bp}, v{bp+1}\nv_add_f32 v{bn}, v{bn}, v{bn+1}")
    k(f"v_rcp_f32 v{bp}, v{bp}\nv_rcp_f32 v{bn}, v{bn}")
    for h, acc in ((0, bp), (1, bn)):
        for i in range(0, 16, 2):
            k(f"v_pk_mul_f32 {v(T+16*h+i,2)}, {v(T+16*h+i,2)}, {v(acc,2)} op_sel:[0,0] op_sel_hi:[1,0]")
    for i in range(16): k(f"v_cvt_pk_bf16_f32 v{O+i}, v{T+2*i}, v{T+2*i+1}")

def build():
    k = Kernel("p2")
    k("qkv2_kernel:")
    k(f"s_mov_b32 s40, {XB3}\ns_mov_b32 s41, {KV+KVL}\ns_branch p2_start")
    k("qkv1_kernel:")
    k(f"s_mov_b32 s40, {XB1}\ns_mov_b32 s41, {KV}")
    k("p2_start:")
    k("s_cmp_ge_u32 s2, 256\ns_cbranch_scc1 p2_end")
    k(f"s_load_dwordx2 s[28:29], s[0:1], {D_WS}")
    k("v_lshrrev_b32 v1, 6, v0\nv_and_b32 v2, 63, v0\nv_readfirstlane_b32 s34, v1")
    k("s_and_b32 s3, s2, 7\ns_lshl_b32 s3, s3, 1\ns_bfe_u32 s4, s2, 0x10003\ns_add_u32 s32, s3, s4\ns_lshr_b32 s33, s2, 4")
    k("s_lshl_b32 s4, s4, 2\ns_add_u32 s35, s33, s4\ns_and_b32 s35, s35, 7")
    k("s_lshl_b32 s36, s32, 2\ns_add_u32 s36, s36, s34")
    k("s_lshl_b32 s37, s36, 15\ns_add_u32 s37, s37, s40")
    k(f"s_mul_i32 s38, s33, 98304\ns_mul_i32 s39, s34, 3072\ns_add_u32 s38, s38, s39\ns_add_u32 s38, s38, {WQ}")
    k("s_lshl_b32 s42, s34, 12\ns_add_u32 s43, s39, 16384")
    k("v_lshlrev_b32 v3, 4, v2")
    k("s_waitcnt lgkmcnt(0)")
    srd_inplace(k, 28, WS_USED)
    def dma_list(n):
        out = []
        sl = (n % 4) * SLOT
        pre = f"s_add_u32 s44, s35, {n}\ns_and_b32 s44, s44, 7\ns_lshl_b32 s45, s44, 12\ns_add_u32 s45, s45, s37\ns_mul_i32 s46, s44, 12288\ns_add_u32 s46, s46, s38\n"
        for i in range(4):
            out.append((pre + f"s_add_u32 m0, s42, {sl}\n" if i == 0 else "") + f"buffer_load_dwordx4 v3, s[28:31], s45 offen offset:{1024*i} lds")
        for i in range(3):
            out.append((f"s_add_u32 m0, s43, {sl}\n" if i == 0 else "") + f"buffer_load_dwordx4 v3, s[28:31], s46 offen offset:{1024*i} lds")
        return out
    for n in range(3):
        for t in dma_list(n): k(t)
    k("v_bfe_u32 v4, v0, 2, 2\nv_bfe_u32 v5, v0, 5, 1\nv_lshl_add_u32 v4, v5, 2, v4\nv_lshlrev_b32 v4, 6, v4")
    k("v_bfe_u32 v6, v0, 4, 1\nv_lshl_add_u32 v4, v6, 5, v4\nv_and_b32 v6, 3, v0\nv_lshl_add_u32 v4, v6, 3, v4\nv_add_u32 v4, s42, v4")
    k(f"v_add_u32 v6, {2*SLOT}, v4\nv_add_u32 v7, 16384, v3\nv_add_u32 v8, {2*SLOT+16384}, v3")
    k("v_mov_b32 v9, 0x3f803f80")
    for r in range(10, 14): k(f"v_mov_b32 v{r}, 0")
    AQ, AK, AV = 16, 32, 48
    XF = 64
    WF = 96
    def rd(n, ks):
        sl = n % 4; xa, wa = ("v4", "v7") if sl < 2 else ("v6", "v8"); so = (sl % 2) * SLOT
        xb = XF + 16 * (n % 2) + 4 * ks; wb = WF + 12 * ((4 * n + ks) % 3)
        k(f"ds_read_b64_tr_b16 {v(xb,2)}, {xa} offset:{so+ks*1024}\nds_read_b64_tr_b16 {v(xb+2,2)}, {xa} offset:{so+ks*1024+512}")
        for t in range(3): k(f"ds_read_b128 {v(wb+4*t,4)}, {wa} offset:{so+ks*3072+t*1024}")
    def dots(n):
        for i in range(16):
            r = XF + 16 * (n % 2) + i
            k(f"v_dot2c_f32_bf16 v{10+(i%2)}, v{r}, v9\nv_dot2c_f32_bf16 v{12+(i%2)}, v{r}, v{r}")
    for n in range(8):
        k(f"s_waitcnt vmcnt({7*min(2,7-n)}) lgkmcnt(0)\ns_barrier")
        rd(n, 0); rd(n, 1)
        dl = dma_list(n + 3) if n + 3 < 8 else []
        if n > 0: dots(n - 1)
        for ks in range(4):
            xb = XF + 16 * (n % 2) + 4 * ks; wb = WF + 12 * ((4 * n + ks) % 3)
            first = (n == 0 and ks == 0)
            k(f"v_mfma_f32_32x32x16_bf16 {v(AK,16)}, {v(wb+4,4)}, {v(xb,4)}, {'0' if first else v(AK,16)}")
            if ks + 2 < 4: rd(n, ks + 2)
            if dl: k(dl.pop(0))
            k(f"v_mfma_f32_32x32x16_bf16 {v(AV,16)}, {v(xb,4)}, {v(wb+8,4)}, {'0' if first else v(AV,16)}")
            if dl: k(dl.pop(0))
            k(f"v_mfma_f32_32x32x16_bf16 {v(AQ,16)}, {v(wb,4)}, {v(xb,4)}, {'0' if first else v(AQ,16)}")
    dots(7)
    k("v_add_f32 v10, v10, v11\nv_add_f32 v12, v12, v13")
    k("v_mov_b32 v11, v10\nv_mov_b32 v13, v12\nv_permlane32_swap_b32 v10, v11\nv_permlane32_swap_b32 v12, v13")
    k("v_add_f32 v10, v10, v11\nv_add_f32 v12, v12, v13")
    k(f"s_mov_b32 s4, {f32(1/512)}\nv_mov_b32 v14, {f32(1e-5)}\nv_mul_f32 v10, s4, v10\nv_fma_f32 v12, s4, v12, v14")
    k("v_fma_f32 v12, -v10, v10, v12\nv_max_f32 v12, v12, v14\nv_rsq_f32 v12, v12")
    k(f"v_and_b32 v10, 31, v0\ns_lshl_b32 s4, s34, 7\nv_lshl_add_u32 v11, v10, 2, s4\nds_write_b32 v11, v12 offset:{RB}")
    k(f"v_mul_f32 v14, {LOG2E}, v12")
    k(f"v_lshl_add_u32 v11, v5, 4, s4")
    for q in range(4): k(f"ds_read_b128 {v(136+4*q,4)}, v11 offset:{RB+32*q}")
    T = 64; O = 104
    softmax(k, AK, 14, T, O)
    k("v_lshl_add_u32 v11, v5, 7, v10\ns_lshl_b32 s4, s34, 5\nv_add_u32 v11, s4, v11\nv_lshlrev_b32 v11, 6, v11")
    k("v_bfe_u32 v13, v0, 1, 2\nv_lshl_add_u32 v11, v13, 4, v11")
    for j in range(4):
        if j == 0: k(f"ds_write_b128 v11, {v(O,4)} offset:{PK}")
        else: k(f"v_xor_b32 v13, {16*j}, v11\nds_write_b128 v13, {v(O+4*j,4)} offset:{PK}")
    for i in range(0, 16, 2): k(f"v_pk_mul_f32 {v(AV+i,2)}, {v(AV+i,2)}, {v(136+i,2)}")
    for i in range(8): k(f"v_cvt_pk_bf16_f32 v{120+i}, v{AV+2*i}, v{AV+2*i+1}")
    k(f"s_lshl_b32 s4, s34, 11\nv_add_u32 v11, s4, v3\nds_write_b128 v11, v[120:123] offset:{VF}\nds_write_b128 v11, v[124:127] offset:{VF+1024}")
    k("s_waitcnt lgkmcnt(0)\ns_barrier")
    Lq = k.label("q")
    k(f"s_cmp_ge_u32 s34, 2\ns_cbranch_scc1 {Lq}")
    for r in range(128, 160): k(f"v_mov_b32 v{r}, v9")
    k("s_lshl_b32 s4, s34, 8\nv_xor_b32 v11, s4, v3")
    k("s_mov_b32 exec_lo, 0xffff\ns_mov_b32 exec_hi, 0xffff")
    for i in range(8): k(f"ds_read_b128 {v(128+4*i,4)}, v11 offset:{VF+1024*i}")
    k("s_mov_b64 exec, -1")
    k("v_bfe_u32 v11, v0, 2, 2\nv_lshl_add_u32 v11, v5, 2, v11")
    k("v_bfe_u32 v13, v0, 4, 1\nv_bfe_u32 v15, v0, 1, 1\nv_lshl_add_u32 v13, v13, 1, v15\nv_lshrrev_b32 v15, 1, v11\nv_xor_b32 v13, v13, v15")
    k("v_lshlrev_b32 v11, 6, v11\nv_lshl_add_u32 v11, v13, 4, v11\nv_and_b32 v13, 1, v0\nv_lshl_add_u32 v11, v13, 3, v11")
    k("s_lshl_b32 s4, s34, 13\nv_add_u32 v11, s4, v11")
    for i in range(8):
        k(f"ds_read_b64_tr_b16 {v(160+4*i,2)}, v11 offset:{PK+1024*i}\nds_read_b64_tr_b16 {v(162+4*i,2)}, v11 offset:{PK+1024*i+512}")
    for i in range(8):
        k(f"v_mfma_f32_32x32x16_bf16 {v(AK,16)}, {v(128+4*i,4)}, {v(160+4*i,4)}, {'0' if i==0 else v(AK,16)}")
    k("s_lshl_b32 s4, s33, 1\ns_add_u32 s4, s4, s34\ns_lshl_b32 s5, s4, 11\ns_add_u32 s5, s5, s41\ns_lshl_b32 s6, s4, 7\ns_add_u32 s6, s6, s41\ns_add_u32 s6, s6, 65536")
    k("v_lshlrev_b32 v11, 2, v10\nv_lshl_add_u32 v11, v5, 9, v11")
    for r in range(8): k(f"buffer_atomic_add_f32 v{AK+r}, v11, s[28:31], s5 offen offset:{(8*(r>>2)+(r&3))*128}")
    k(f"s_mov_b32 exec_hi, 0\nbuffer_atomic_add_f32 v{AK+8}, v11, s[28:31], s6 offen\ns_mov_b64 exec, -1")
    k(f"{Lq}:")
    softmax(k, AQ, 14, T, O)
    k("v_bfe_u32 v11, v0, 4, 1\nv_lshlrev_b32 v11, 15, v11\nv_lshl_add_u32 v11, v5, 10, v11\nv_and_b32 v13, 15, v0\nv_lshl_add_u32 v11, v13, 4, v11")
    k(f"s_lshl_b32 s4, s36, 16\ns_lshl_b32 s5, s33, 11\ns_add_u32 s4, s4, s5\ns_add_u32 s4, s4, {PHI}")
    for j in range(4): k(f"buffer_store_dwordx4 {v(O+4*j,4)}, v11, s[28:31], s4 offen offset:{256*j}")
    k("p2_end:\ns_endpgm")
    k.finish()
    return k
```

```python
from common import *
L_WO = 0
KVB = 65536
ZB = KVB + 32768
XR = ZB + 2048
TR = XR + 8192
P3_LDS = TR + 4 * 2304

def build():
    k = Kernel("p3")
    k("out2_kernel:")
    k(f"s_mov_b32 s40, {XB3}\ns_mov_b32 s41, {KV+KVL}\ns_mov_b32 s43, 1\ns_branch p3_start")
    k("out1_kernel:")
    k(f"s_mov_b32 s40, {XB1}\ns_mov_b32 s41, {KV}\ns_mov_b32 s43, 0")
    k("p3_start:")
    k("s_cmp_ge_u32 s2, 256\ns_cbranch_scc1 p3_end")
    k(f"s_load_dwordx2 s[28:29], s[0:1], {D_WS}\ns_load_dwordx2 s[24:25], s[0:1], {D_OUT}")
    k("v_lshrrev_b32 v1, 6, v0\nv_and_b32 v2, 63, v0\nv_readfirstlane_b32 s34, v1")
    k("s_and_b32 s3, s2, 7\ns_lshl_b32 s3, s3, 2\ns_bfe_u32 s4, s2, 0x20003\ns_add_u32 s32, s3, s4\ns_lshr_b32 s33, s2, 5")
    k("v_lshlrev_b32 v3, 4, v2")
    k("s_lshl_b32 s35, s34, 14\ns_add_u32 s36, s35, s41")
    k("s_lshl_b32 s37, s34, 10\ns_add_u32 s37, s37, s41\ns_add_u32 s37, s37, 65536")
    k(f"s_lshl_b32 s38, s33, 16\ns_add_u32 s38, s38, s35\ns_add_u32 s38, s38, {WO}")
    k(f"s_lshl_b32 s39, s32, 2\ns_add_u32 s39, s39, s34\ns_lshl_b32 s42, s39, 15\ns_add_u32 s42, s42, {PHI}")
    k("s_lshr_b32 s44, s39, 1\ns_lshl_b32 s44, s44, 15\ns_lshl_b32 s45, s33, 12\ns_add_u32 s44, s44, s45")
    k("s_and_b32 s45, s34, 1\ns_lshl_b32 s46, s45, 11\ns_add_u32 s46, s46, s44\ns_add_u32 s46, s46, s40")
    k("s_waitcnt lgkmcnt(0)")
    srd_inplace(k, 28, WS_USED); srd_inplace(k, 24, 2097152)
    KS = 64
    for i in range(16):
        k(f"buffer_load_dwordx4 {v(KS+4*i,4)}, v3, s[28:31], s36 offen offset:{1024*(i%4)}")
        if i % 4 == 3 and i < 15: k("s_add_u32 s36, s36, 4096")
    k(f"buffer_load_dwordx4 {v(KS+64,4)}, v3, s[28:31], s37 offen")
    k(f"s_lshl_b32 s4, s34, 11\ns_add_u32 m0, s4, {XR}")
    k("buffer_load_dwordx4 v3, s[28:31], s46 offen lds\nbuffer_load_dwordx4 v3, s[28:31], s46 offen offset:1024 lds")
    for i in range(16):
        if i % 4 == 0: k(f"s_add_u32 m0, s35, {L_WO+1024*i}")
        k(f"buffer_load_dwordx4 v3, s[28:31], s38 offen offset:{1024*(i%4)} lds")
        if i % 4 == 3 and i < 15: k("s_add_u32 s38, s38, 4096")
    def phi_load(h):
        k(f"buffer_load_dwordx4 {a(4*h,4)}, v3, s[28:31], s42 offen offset:{1024*(h%4)}")
        if h % 4 == 3 and h < 31: k("s_add_u32 s42, s42, 4096")
    NPRE = 16
    for h in range(NPRE): phi_load(h)
    k("v_bfe_u32 v4, v0, 1, 2\nv_lshlrev_b32 v4, 8, v4\nv_lshrrev_b32 v5, 3, v2\nv_lshl_add_u32 v4, v5, 4, v4\nv_and_b32 v5, 1, v0\nv_lshl_add_u32 v4, v5, 3, v4")
    k(f"s_lshl_b32 s4, s34, 13\ns_add_u32 s4, s4, {KVB}\nv_add_u32 v4, s4, v4")
    for i in range(16):
        b = KS + 4 * i
        k(f"v_cvt_pk_bf16_f32 v{b}, v{b}, v{b+1}\nv_cvt_pk_bf16_f32 v{b+1}, v{b+2}, v{b+3}")
        k(f"ds_write_b64 v4, {v(b,2)} offset:{(i>>1)*1024+(i&1)*128}")
    b = KS + 64
    k(f"v_cvt_pk_bf16_f32 v{b}, v{b}, v{b+1}\nv_cvt_pk_bf16_f32 v{b+1}, v{b+2}, v{b+3}")
    k(f"v_lshlrev_b32 v5, 3, v0\nv_add_u32 v5, {ZB}, v5\nds_write_b64 v5, {v(b,2)}")
    for h in range(NPRE, 32): phi_load(h)
    k(f"v_add_u32 v6, {KVB}, v3\nv_lshrrev_b32 v7, 4, v2\nv_lshlrev_b32 v8, 4, v7\nv_add_u32 v8, {ZB}, v8")
    k("v_bfe_u32 v9, v0, 2, 2\nv_lshl_add_u32 v9, v7, 4, v9\nv_lshlrev_b32 v9, 6, v9\nv_and_b32 v10, 3, v0\nv_lshl_add_u32 v9, v10, 3, v9")
    k(f"s_lshr_b32 s4, s34, 1\ns_lshl_b32 s4, s4, 12\ns_lshl_b32 s5, s45, 5\ns_add_u32 s4, s4, s5\ns_add_u32 s4, s4, {XR}\nv_add_u32 v9, s4, v9")
    for r in range(12, 16): k(f"v_mov_b32 v{r}, {f32(1e-6)}")
    k("s_waitcnt vmcnt(32) lgkmcnt(0)\ns_barrier")
    AC = 16
    for c in range(4): k(f"ds_read_b64_tr_b16 {v(32+2*c,2)}, v9 offset:{256*c}")
    FA = 64
    FW = 96
    ND = 128
    OF = 160
    def rdA(hp):
        b = FA + 16 * (hp % 2)
        for j in range(2):
            k(f"ds_read_b128 {v(b+8*j,4)}, v6 offset:{(2*hp+j)*1024}\nds_read_b128 {v(b+8*j+4,4)}, v8 offset:{(2*hp+j)*64}")
    def rdW(hp):
        b = FW + 16 * (hp % 2)
        for c in range(4): k(f"ds_read_b128 {v(b+4*c,4)}, v3 offset:{L_WO+hp*4096+c*1024}")
    def mmA(hp):
        b = FA + 16 * (hp % 2); d = ND + 16 * (hp % 2)
        for j in range(2):
            k(f"v_mfma_f32_16x16x32_bf16 {v(d+8*j+4,4)}, {v(b+8*j+4,4)}, {a(8*hp+4*j,4)}, v[12:15]")
            k(f"v_mfma_f32_16x16x32_bf16 {v(d+8*j,4)}, {v(b+8*j,4)}, {a(8*hp+4*j,4)}, 0")
    def norm(hp):
        d = ND + 16 * (hp % 2); o = OF + 4 * (hp % 2)
        for j in range(2): k(f"v_rcp_f32 v{d+8*j+4}, v{d+8*j+4}")
        for j in range(2):
            for r in range(4): k(f"v_mul_f32 v{d+8*j+r}, v{d+8*j+r}, v{d+8*j+4}")
            k(f"v_cvt_pk_bf16_f32 v{o+2*j}, v{d+8*j}, v{d+8*j+1}\nv_cvt_pk_bf16_f32 v{o+2*j+1}, v{d+8*j+2}, v{d+8*j+3}")
    def mmW(hp):
        b = FW + 16 * (hp % 2); o = OF + 4 * (hp % 2)
        for c in range(4): k(f"v_mfma_f32_16x16x32_bf16 {v(AC+4*c,4)}, {v(b+4*c,4)}, {v(o,4)}, {v(AC+4*c,4)}")
    rdA(0); rdA(1); rdW(0)
    for c in range(4):
        for i in range(2): k(f"v_lshlrev_b32 v{AC+4*c+2*i}, 16, v{32+2*c+i}\nv_and_b32 v{AC+4*c+2*i+1}, 0xffff0000, v{32+2*c+i}")
    mmA(0)
    for hp in range(16):
        if hp + 1 < 16: mmA(hp + 1)
        if hp + 2 < 16: rdA(hp + 2)
        if hp + 1 < 16: rdW(hp + 1)
        norm(hp)
        mmW(hp)
    for i in range(8): k(f"v_cvt_pk_bf16_f32 v{32+i}, v{AC+2*i}, v{AC+2*i+1}")
    Lf = k.label("fin")
    k(f"s_cmp_eq_u32 s43, 1\ns_cbranch_scc1 {Lf}")
    k(f"v_and_b32 v10, 15, v0\nv_mul_u32_u24 v11, 144, v10\nv_lshl_add_u32 v11, v7, 5, v11\ns_mul_i32 s4, s34, 2304\ns_add_u32 s4, s4, {TR}\nv_add_u32 v11, s4, v11")
    k("ds_write_b128 v11, v[32:35]\nds_write_b128 v11, v[36:39] offset:16")
    k("v_bfe_u32 v11, v0, 2, 2\nv_mul_u32_u24 v11, 144, v11\nv_lshl_add_u32 v11, v7, 5, v11\nv_and_b32 v40, 3, v0\nv_lshl_add_u32 v11, v40, 3, v11\nv_add_u32 v11, s4, v11")
    for i in range(4): k(f"ds_read_b64_tr_b16 {v(44+2*i,2)}, v11 offset:{576*i}")
    k(f"v_mul_f32 v41, v{AC}, v{AC}\nv_add_f32 v40, v{AC}, v{AC+1}")
    for r in range(AC + 1, AC + 16): k(f"v_fmac_f32 v41, v{r}, v{r}")
    for r in range(AC + 2, AC + 16): k(f"v_add_f32 v40, v40, v{r}")
    k("v_permlane32_swap_b32 v40, v41\nv_add_f32 v40, v40, v41\nv_mov_b32 v41, v40\nv_permlane16_swap_b32 v40, v41\nv_add_f32 v40, v40, v41")
    k(f"v_lshlrev_b32 v42, 6, v2\ns_lshl_b32 s5, s45, 5\ns_add_u32 s5, s5, s44\ns_add_u32 s5, s5, {XB2}")
    k("buffer_store_dwordx4 v[44:47], v42, s[28:31], s5 offen\nbuffer_store_dwordx4 v[48:51], v42, s[28:31], s5 offen offset:16")
    k(f"v_bfe_u32 v42, v0, 5, 1\nv_lshlrev_b32 v42, 13, v42\nv_lshl_add_u32 v42, v10, 2, v42\ns_lshl_b32 s5, s39, 6\ns_add_u32 s5, s5, {ST3}")
    k("s_mov_b32 exec_lo, 0xffff\ns_mov_b32 exec_hi, 0xffff\nbuffer_atomic_add_f32 v40, v42, s[28:31], s5 offen")
    k("s_endpgm")
    k(f"{Lf}:")
    k("v_and_b32 v10, 15, v0\nv_lshlrev_b32 v10, 10, v10\nv_lshl_add_u32 v10, v7, 5, v10\ns_lshl_b32 s5, s39, 14\ns_lshl_b32 s6, s33, 7\ns_add_u32 s5, s5, s6")
    k("buffer_store_dwordx4 v[32:35], v10, s[24:27], s5 offen\nbuffer_store_dwordx4 v[36:39], v10, s[24:27], s5 offen offset:16")
    k("p3_end:\ns_endpgm")
    k.finish()
    return k
```

```python
import sys
from asmlib import *
import k0, conv, p2, p3
NAME = "interleave_layers__ssm_conv_s4d__linear_kernel_hedgehog__prompt"
hdr = "".join(l for l in open(f"cdna_kernels/{NAME}.s.ref").read().splitlines(True) if l.startswith(";") and "@launch" not in l and "Override" not in l and "grid=ceil" not in l)
K0, CV, P2, P3 = k0.build(), conv.build(), p2.build(), p3.build()
launches = [("prep_kernel", 320, 512, k0.K0_LDS), ("conv1_kernel", 256, 512, conv.CONV_LDS), ("qkv1_kernel", 256, 256, p2.P2_LDS), ("out1_kernel", 256, 256, p3.P3_LDS),
            ("conv2_kernel", 256, 512, conv.CONV_LDS), ("qkv2_kernel", 256, 256, p2.P2_LDS), ("out2_kernel", 256, 256, p3.P3_LDS)]
ks = [(K0, ["prep_kernel"]), (CV, ["conv1_kernel", "conv2_kernel"]), (P2, ["qkv1_kernel", "qkv2_kernel"]), (P3, ["out1_kernel", "out2_kernel"])]
out = sys.argv[1] if len(sys.argv) > 1 else f"cdna_kernels/{NAME}.s"
open(out, "w").write(build_file(hdr, launches, ks))
```

```python
from asmlib import *
from layout import *
import struct, os
def f32(x): return "0x%08x" % struct.unpack("<I", struct.pack("<f", x))[0]
def srd_inplace(k, d, nbytes):
    k(f"s_mov_b32 s{d+2}, {nbytes}\ns_mov_b32 s{d+3}, 0x20000")
def row16_sum(k, r):
    for sh in (8, 4, 2, 1):
        k(f"v_add_f32_dpp v{r}, v{r}, v{r} row_ror:{sh} row_mask:0xf bank_mask:0xf")
STAMPS = os.environ.get("STAMPS", "0") == "1"
TS = 24 * MB
if STAMPS: WS_USED = 32 * MB
STAMP_NAMES = {}
def stamp(k, i, name=""):
    if not STAMPS: return
    STAMP_NAMES[i] = name
    k(f"s_memrealtime s[98:99]\ns_waitcnt lgkmcnt(0)\nv_writelane_b32 v243, s98, {i}" if i >= 56 else f"s_memtime s[98:99]\ns_waitcnt lgkmcnt(0)\nv_writelane_b32 v243, s98, {i}")
def stamp_flush(k):
    if not STAMPS: return
    k("s_mov_b64 exec, -1\ns_waitcnt vmcnt(0)")
    stamp(k, 55, "end"); stamp(k, 63, "rt_end")
    k(f"s_lshl_b32 s100, s2, 12\ns_lshl_b32 s101, s47, 9\ns_add_u32 s100, s100, s101\ns_add_u32 s100, s100, {TS}")
    k("v_mbcnt_lo_u32_b32 v1, -1, 0\nv_mbcnt_hi_u32_b32 v1, -1, v1\nv_lshlrev_b32 v1, 2, v1")
    k("buffer_store_dword v242, v1, s[28:31], s100 offen\nbuffer_store_dword v243, v1, s[28:31], s100 offen offset:256")
```

```python
MB = 1 << 20
XB0 = 0 * MB
XB1 = 2 * MB
XB2 = 4 * MB
XB3 = 6 * MB
PHI = 8 * MB
WQ  = 16 * MB
WO  = WQ + 3 * (MB // 2)
KV  = 18 * MB
KVL = 0x11000
ST3 = KV + 2 * KVL
CNT = ST3 + 16384
PCNT = CNT + 5 * 16384
CNTW = PCNT + 2 * 16384
CS = CNTW + 16384
ZERO_BYTES = 2 * KVL + 16384 + 8 * 16384 + 8192
ST1 = KV + 0x4c000
CNT0 = KV + 0x50000
WS_USED = 19 * MB
KI = 0
A_U, A_LOGA, A_AIM, A_CR, A_CI, A_LOGDT, A_DSKIP, B_X, B_WQKV, B_WPHI, B_WO, D_OUT, D_DBG, D_WS = [8 * i for i in range(14)]
KI_NEAR = 0; KI_MID = 9600; KI_FAR = 9600 + 1280; KI_K1024 = 9600 + 1280 + 512; KI_CH = 12288
LOG2E = 0x3fb8aa3b
```

```python
from common import *
import sys
LDS_BYTES = 163840
SC = "sc1"
def arrive(k, wave, base="s56"):
    L = k.label("na")
    k(f"s_cmp_lg_u32 s47, {wave}\ns_cbranch_scc1 {L}")
    k(f"s_bfe_u32 s4, s2, 0x30003\ns_lshl_b32 s4, s4, 8\ns_add_u32 s4, s4, {base}")
    k("v_mov_b32 v4, 1\nv_lshlrev_b32 v5, 11, v2\ns_mov_b64 exec, 0xff\nbuffer_atomic_add v4, v5, s[28:31], s4 offen sc1\ns_mov_b64 exec, -1")
    k(f"{L}:")
def poll(k, wave, base="s56", cnt=32):
    L = k.label("np"); Lp = k.label("pl"); Lo = k.label("po")
    k(f"s_cmp_lg_u32 s47, {wave}\ns_cbranch_scc1 {L}")
    k(f"s_and_b32 s4, s2, 7\ns_lshl_b32 s4, s4, 11\ns_add_u32 s4, s4, {base}\nv_lshlrev_b32 v5, 8, v2\ns_mov_b64 exec, 0xff\ns_mov_b32 s5, 0x40000")
    k(f"{Lp}:\ns_sleep 1\nbuffer_load_dword v4, v5, s[28:31], s4 offen sc1\ns_sub_u32 s5, s5, 1\ns_cbranch_scc1 {Lo}")
    k(f"s_waitcnt vmcnt(0)\nv_cmp_ne_u32 vcc, {cnt}, v4\ns_cbranch_vccnz {Lp}")
    k(f"{Lo}:\ns_mov_b64 exec, -1\n{L}:")
    if base == "s56": k("s_add_u32 s56, s56, 16384")

L_KI = 0
UQ = 82 * 16; U4 = 24576; UC = 4 * UQ
WIN = U4 + 2 * UC + 128
WOFF = [0, 3200, 6400, 6400 + 2176, 6400 + 2 * 2176]; WC = 6400 + 3 * 2176
YB = 0; YS = 8 * 68 * 16
assert 4 * YS <= WIN and WIN + 2 * WC <= 65536
L_W = 65536
TP = 528; TA = 65536; TB = TA + 2 * 32 * TP; RC = TA + 4 * 32 * TP
XT = RC + 2560
WS_ = XT + 8192
KP = 244

def ceval(k, dst, er, ei, P, t):
    if P == 1:
        k(f"v_exp_f32 v{t}, v{er}\nv_fract_f32 v{t+1}, v{ei}")
    else:
        k(f"v_mul_f32 v{t}, {f32(P)}, v{er}\nv_mul_f32 v{t+1}, {f32(P)}, v{ei}")
        k(f"v_exp_f32 v{t}, v{t}\nv_fract_f32 v{t+1}, v{t+1}")
    k(f"v_cos_f32 v{dst}, v{t+1}\nv_sin_f32 v{dst+1}, v{t+1}")
    k(f"v_mul_f32 v{dst}, v{dst}, v{t}\nv_mul_f32 v{dst+1}, v{dst+1}, v{t}")
def cmul(k, d, a_, w, wn, t):
    k(f"v_pk_mul_f32 {v(t,2)}, {v(a_,2)}, {v(w,2)} op_sel:[0,0] op_sel_hi:[0,1]")
    k(f"v_pk_fma_f32 {v(d,2)}, {v(a_,2)}, {v(wn,2)}, {v(t,2)} op_sel:[1,0,0] op_sel_hi:[1,1,1]")
def neg_rot(k, wn, w):
    k(f"v_sub_f32 v{wn}, 0, v{w+1}\nv_mov_b32 v{wn+1}, v{w}")

def kgen_tables(k, sdt):
    k(f"s_lshl_b32 s4, s{sdt}, 16\ns_and_b32 s5, s{sdt}, 0xffff0000")
    k(f"s_bitcmp1_b32 s47, 1\ns_cselect_b32 s4, s5, s4")
    k(f"v_mov_b32 v14, {LOG2E}\nv_mul_f32 v15, s4, v14\nv_exp_f32 v15, v15")
    k("v_lshlrev_b32 v10, 16, v10\nv_mul_f32 v10, v10, v14\nv_exp_f32 v10, v10")
    k("v_cvt_pk_bf16_f32 v15, v15, v10")
    k("v_and_b32 v10, 0xffff0000, v15\nv_lshlrev_b32 v15, 16, v15")
    k("v_lshlrev_b32 v11, 16, v11")
    k("v_mul_f32 v10, v10, v15\nv_mul_f32 v11, v11, v15")
    k(f"v_mul_f32 v10, {f32(-1.4426950408889634)}, v10\nv_mul_f32 v11, 0.15915494, v11")
    k(f"v_and_b32 v16, 127, v0\nv_lshlrev_b32 v16, 2, v16\nv_bfe_u32 v17, v0, 7, 1")
    k(f"v_mul_u32_u24 v17, {32*TP}, v17\nv_add_u32 v16, v16, v17\nv_add_u32 v16, {TA}, v16")
    Lr = k.label("role1"); Ld = k.label("tabdone")
    k(f"s_cmp_ge_u32 s47, 4\ns_cbranch_scc1 {Lr}")
    TBo = TB - TA
    ceval(k, 20, 10, 11, 8, 18); neg_rot(k, 22, 20)
    k(f"v_mov_b32 v28, 0x3f80\nds_write_b32 v16, v28 offset:{TBo}")
    k(f"v_cvt_pk_bf16_f32 v29, v20, v21\nds_write_b32 v16, v29 offset:{TBo+TP}")
    cur = 20
    for i in range(2, 32):
        d = 24 if i % 2 == 0 else 26
        cmul(k, d, cur, 20, 22, 18); cur = d
        o = 28 + (i % 2)
        k(f"v_cvt_pk_bf16_f32 v{o}, v{d}, v{d+1}\nds_write_b32 v16, v{o} offset:{TBo+i*TP}")
    k(f"s_branch {Ld}\n{Lr}:")
    ceval(k, 20, 10, 11, 1, 18); neg_rot(k, 22, 20)
    ceval(k, 24, 10, 11, 256, 18); neg_rot(k, 26, 24)
    k("v_add_f32 v15, v15, v15\nv_lshlrev_b32 v12, 16, v12\nv_lshlrev_b32 v13, 16, v13")
    k("v_mul_f32 v30, v12, v15\nv_mul_f32 v31, v13, v15")
    cnt = [0]
    def put(r, rows):
        o = 28 + (cnt[0] % 2); cnt[0] += 1
        k(f"v_cvt_pk_bf16_f32 v{o}, v{r}, -v{r+1}")
        for row in rows: k(f"ds_write_b32 v16, v{o} offset:{row*TP}")
    put(30, [0])
    for i in range(1, 9):
        cmul(k, 30 + 2 * i, 28 + 2 * i, 20, 22, 18)
        if i < 8: put(30 + 2 * i, [i])
    g = lambda i: 30 + 2 * i
    for i, rows in ((0, [8]), (2, [9]), (4, [10, 12]), (6, [13]), (8, [14]), (4, [16]), (8, [17]), (4, [20]), (8, [21]), (8, [18]), (8, [19]), (8, [22]), (8, [23])):
        cmul(k, g(i), g(i), 24, 26, 18); put(g(i), rows)
    k(f"{Ld}:")

def kgen_mfma_scatter(k):
    k(f"v_and_b32 v16, 31, v0\nv_bfe_u32 v17, v0, 5, 1")
    k(f"v_mul_u32_u24 v18, {TP}, v16\nv_lshl_add_u32 v18, v17, 4, v18")
    k(f"s_mul_i32 s4, s47, {32*TP}\ns_add_u32 s4, s4, {TA}\nv_add_u32 v18, s4, v18")
    NB = 6
    def rd(ks):
        b = 40 + 8 * (ks % NB)
        k(f"ds_read_b128 {v(b,4)}, v18 offset:{ks*32}\nds_read_b128 {v(b+4,4)}, v18 offset:{TB-TA+ks*32}")
    for ks in range(NB): rd(ks)
    k("v_lshlrev_b32 v19, 3, v16\nv_lshl_add_u32 v19, v17, 2, v19")
    k(f"s_mul_i32 s4, s47, 1280\ns_add_u32 s4, s4, {RC + 2*(572-256)}")
    k("v_lshlrev_b32 v36, 1, v19\nv_sub_u32 v36, s4, v36")
    k(f"s_mul_i32 s5, s47, {KI_CH}\ns_add_u32 s5, s5, {L_KI+KI_MID}")
    k("v_cmp_eq_u32 vcc, 63, v2\nv_lshlrev_b32 v37, 2, v2\nv_sub_u32 v37, s5, v37")
    k("v_lshl_add_u32 v19, v17, 6, v16\nv_lshlrev_b32 v19, 1, v19\nv_sub_u32 v19, s5, v19")
    for ks in range(16):
        b = 40 + 8 * (ks % NB)
        k(f"v_mfma_f32_32x32x16_bf16 v[20:35], {v(b,4)}, {v(b+4,4)}, {'0' if ks==0 else 'v[20:35]'}")
        if ks + NB < 16: rd(ks + NB)
    k("v_cvt_pk_bf16_f32 v38, v23, v22\nv_cvt_pk_bf16_f32 v39, v21, v20\nds_write_b64 v36, v[38:39] offset:512")
    k("v_cvt_pk_bf16_f32 v40, v26, v25\nv_cvt_pk_bf16_f32 v41, v24, v24\nds_write_b64 v36, v[40:41]")
    k(f"v_cndmask_b32 v42, v29, 0, vcc\nv_cvt_pk_bf16_f32 v42, v42, v28\nds_write_b32 v37, v42 offset:{2*382}")
    k(f"v_cvt_pk_bf16_f32 v45, v30, v31\nds_write_b16 v19, v45 offset:{1280+2*127}\nds_write_b16_d16_hi v19, v45 offset:{1280+2*(127-32)}")
    k("s_and_saveexec_b64 s[6:7], vcc")
    k("v_mov_b32 v46, 0\nv_cvt_pk_bf16_f32 v46, v46, v26\nv_cvt_pk_bf16_f32 v47, v26, v26")
    k(f"s_sub_u32 s4, s4, {2*(572-256)-120}\nv_mov_b32 v48, s4\nds_write_b64 v48, v[46:47]")
    k(f"v_mov_b32 v48, s5\nds_write_b32 v48, v29 offset:{1280+512}")
    k("s_mov_b64 exec, s[6:7]")

WSL = WS_; WPH = WSL + 8192
def wp_loads(k):
    k("s_bfe_u32 s58, s2, 0x20002\ns_lshr_b32 s32, s2, 4\ns_and_b32 s33, s2, 3")
    k("s_mov_b32 s40, s80\ns_mov_b32 s41, s81\ns_mov_b32 s42, 0x180000\ns_movk_i32 s35, 3072\ns_lshl_b32 s34, s58, 10")
    L = k.label("nwo")
    k(f"s_cmp_lg_u32 s58, 3\ns_cbranch_scc1 {L}\ns_mov_b32 s40, s84\ns_mov_b32 s41, s85\ns_mov_b32 s42, 0x80000\ns_movk_i32 s35, 1024\ns_mov_b32 s34, 0\n{L}:")
    k("v_lshrrev_b32 v14, 4, v0\nv_mul_lo_u32 v14, v14, s35\nv_and_b32 v15, 15, v0\nv_lshl_add_u32 v14, v15, 4, v14")
    k(f"s_mul_i32 s4, s35, s32\ns_lshl_b32 s4, s4, 5\ns_add_u32 s34, s34, s4\ns_lshl_b32 s4, s33, 8\ns_add_u32 s34, s34, s4\ns_lshl_b32 s5, s47, 10\ns_add_u32 m0, s5, {WSL}")
    k("buffer_load_dwordx4 v14, s[40:43], s34 offen lds")
    k("s_mov_b32 s40, s82\ns_mov_b32 s41, s83\ns_mov_b32 s42, 16384")
    k(f"s_lshl_b32 s33, s33, 2\ns_add_u32 s33, s33, s49\ns_lshl_b32 s4, s33, 10\ns_lshl_b32 s5, s49, 10\ns_add_u32 m0, s5, {WPH}")
    k("buffer_load_dwordx4 v3, s[40:43], s4 offen lds")
    k(f"s_mul_i32 s59, s33, 98304\ns_lshl_b32 s4, s58, 10\ns_add_u32 s59, s59, s4\ns_add_u32 s59, s59, {WQ}\ns_lshl_b32 s4, s33, 15\ns_add_u32 s4, s4, {WO}")
    k("s_cmp_eq_u32 s58, 3\ns_cselect_b32 s59, s4, s59\ns_mul_i32 s4, s35, s32\ns_lshl_b32 s4, s4, 1\ns_add_u32 s59, s59, s4\ns_add_u32 s60, s59, s35")
    k(f"s_lshl_b32 s61, s58, 11\ns_lshl_b32 s4, s33, 7\ns_add_u32 s61, s61, s4\ns_add_u32 s61, s61, {CS}")
def wp_compute(k):
    k("v_and_b32 v16, 31, v0\nv_bfe_u32 v17, v0, 5, 1")
    k(f"s_lshl_b32 s4, s49, 6\ns_add_u32 s4, s4, {WSL}\nv_lshl_add_u32 v18, v16, 8, s4\nv_lshl_add_u32 v18, v17, 4, v18")
    k(f"s_lshl_b32 s4, s49, 10\ns_add_u32 s4, s4, {WPH}\nv_bfe_u32 v21, v0, 2, 2\nv_lshl_add_u32 v21, v17, 3, v21\nv_lshl_add_u32 v21, v21, 5, s4")
    k("v_and_b32 v22, 1, v0\nv_lshl_add_u32 v22, v22, 9, v21\nv_bfe_u32 v23, v0, 1, 1\nv_lshl_add_u32 v22, v23, 3, v22\nv_bfe_u32 v23, v0, 4, 1\nv_lshl_add_u32 v22, v23, 4, v22")
    k("ds_read_b64_tr_b16 v[24:25], v22\nds_read_b64_tr_b16 v[26:27], v22 offset:128")
    k("ds_read_b64_tr_b16 v[40:41], v21 offset:24\nds_read_b64_tr_b16 v[42:43], v21 offset:152")
    k("ds_read_b128 v[44:47], v18\nds_read_b128 v[48:51], v18 offset:32")
    k("v_bfe_u32 v19, v16, 2, 1\nv_lshrrev_b32 v20, 3, v16\nv_and_b32 v23, 3, v16\nv_lshl_add_u32 v20, v20, 2, v23")
    Lnv = k.label("notv"); Lid = k.label("ident"); Lb = k.label("bdone")
    k(f"s_cmp_lg_u32 s58, 2\ns_cbranch_scc1 {Lnv}\nv_lshrrev_b32 v19, 4, v16\nv_and_b32 v20, 15, v16\n{Lnv}:")
    for j in range(4): k(f"v_mov_b32 v{36+j}, 0")
    k(f"s_cmp_ge_u32 s58, 2\ns_cbranch_scc1 {Lid}")
    k(f"s_cmp_lg_u32 s58, 0\ns_cbranch_scc1 {Lb}")
    for j in range(4): k(f"v_mov_b32_dpp v{36+j}, v{40+j} quad_perm:[3,3,3,3] row_mask:0xf bank_mask:0xf")
    for j in range(4): k(f"v_xor_b32 v{36+j}, 0x80008000, v{36+j}")
    k(f"s_branch {Lb}\n{Lid}:")
    k("v_lshlrev_b32 v28, 3, v17\nv_sub_u32 v23, v20, v28")
    k("v_and_b32 v28, 1, v23\nv_lshlrev_b32 v28, 4, v28\nv_mov_b32 v29, 0x3f80\nv_lshlrev_b32 v29, v28, v29\nv_ashrrev_i32 v23, 1, v23")
    for j in range(4): k(f"v_cmp_eq_u32 vcc, {j}, v23\nv_cndmask_b32 v{24+j}, 0, v29, vcc")
    k(f"{Lb}:")
    k("v_cmp_eq_u32 vcc, 0, v19")
    for j in range(4):
        k(f"v_cndmask_b32 v{28+j}, 0, v{24+j}, vcc\nv_cndmask_b32 v{32+j}, v{24+j}, 0, vcc\nv_cndmask_b32 v{36+j}, 0, v{36+j}, vcc")
    k("v_mfma_f32_32x32x16_bf16 v[64:79], v[44:47], v[28:31], 0\nv_mfma_f32_32x32x16_bf16 v[64:79], v[48:51], v[32:35], v[64:79]\nv_mfma_f32_32x32x16_bf16 v[64:79], v[44:47], v[36:39], v[64:79]")
    k("s_cmp_eq_u32 s58, 0\ns_cselect_b32 s4, 27, 99\nv_cmp_eq_u32 vcc, s4, v16\nv_mov_b32 v23, 0x3f803f80")
    for j in range(8): k(f"v_cvt_pk_bf16_f32 v{80+j}, v{64+2*j}, v{65+2*j}")
    for j in range(8): k(f"v_cndmask_b32 v{80+j}, v{80+j}, v23, vcc")
    k(f"buffer_store_dwordx4 v[80:83], v3, s[28:31], s59 offen {SC}\nbuffer_store_dwordx4 v[84:87], v3, s[28:31], s60 offen {SC}")
    k("v_mov_b32 v240, 0\nv_mov_b32 v241, 0")
    for j in range(8): k(f"v_dot2c_f32_bf16 v{240+(j%2)}, v{80+j}, v23")
    k("v_add_f32 v240, v240, v241\nv_mov_b32 v241, v240\nv_permlane32_swap_b32 v240, v241\nv_add_f32 v240, v240, v241")

def zero_upads(k):
    k("v_mov_b32 v4, 0\nv_mov_b32 v5, 0\nv_mov_b32 v6, 0\nv_mov_b32 v7, 0")
    k(f"v_and_b32 v8, 7, v0\nv_mul_u32_u24 v8, {UQ}, v8\nv_lshrrev_b32 v9, 3, v0\nv_lshl_add_u32 v8, v9, 4, v8")
    k(f"v_cmp_gt_u32 vcc, 144, v0\ns_and_saveexec_b64 s[6:7], vcc\nds_write_b128 v8, v[4:7] offset:{U4}\ns_mov_b64 exec, s[6:7]")

def zero_wpads(k):
    L = k.label("zw")
    k(f"s_cmp_lg_u32 s47, 7\ns_cbranch_scc1 {L}\ns_mov_b64 exec, 0xf")
    for c in range(2):
        for o in WOFF: k(f"ds_write_b128 v3, v[4:7] offset:{WIN+c*WC+o}")
    k(f"s_mov_b64 exec, -1\n{L}:")

def phase0(k):
    k(f"s_load_dwordx16 s[64:79], s[0:1], 0\ns_load_dwordx8 s[80:87], s[0:1], 64\ns_load_dwordx4 s[88:91], s[0:1], 96")
    k("v_lshrrev_b32 v1, 6, v0\nv_and_b32 v2, 63, v0\nv_readfirstlane_b32 s47, v1\nv_lshlrev_b32 v3, 4, v2")
    k("s_lshr_b32 s48, s47, 2\ns_and_b32 s49, s47, 3")
    k("s_and_b32 s3, s2, 7\ns_lshl_b32 s3, s3, 5\ns_lshr_b32 s4, s2, 3\ns_add_u32 s57, s3, s4")
    k(f"s_mov_b32 s50, 0\ns_mov_b32 s52, {XB0}\ns_mov_b32 s53, {ST1}\ns_mov_b32 s54, {KV}\ns_mov_b32 s55, {PHI}\ns_mov_b32 s56, {CNT}\ns_mov_b32 s62, {PCNT}")
    k("v_mov_b32 v4, 0\nv_mov_b32 v5, 0\nv_mov_b32 v6, 0\nv_mov_b32 v7, 0")
    k(f"v_lshlrev_b32 v8, 4, v0\nv_add_u32 v10, {RC}, v8\nv_cmp_gt_u32 vcc, 160, v0\ns_and_saveexec_b64 s[6:7], vcc\nds_write_b128 v10, v[4:7]")
    k(f"ds_write_b128 v8, v[4:7] offset:{L_KI+KI_MID}\nds_write_b128 v8, v[4:7] offset:{L_KI+KI_CH+KI_MID}\ns_mov_b64 exec, s[6:7]")
    k("s_waitcnt lgkmcnt(0)")
    stamp(k, 1, "karg")
    def mk(d, p, n): k(f"s_mov_b32 s{d}, s{p}\ns_mov_b32 s{d+1}, s{p+1}"); srd_inplace(k, d, n)
    mk(28, 90, WS_USED); mk(24, 86, 2097152); mk(20, 88, 256); mk(40, 64, 2097152)
    Lz = k.label("nz")
    k(f"s_cmp_lg_u32 s2, 0\ns_cbranch_scc1 {Lz}\ns_cmp_lg_u32 s47, 3\ns_cbranch_scc1 {Lz}")
    k(f"v_lshlrev_b32 v9, 8, v2\ns_mov_b32 s4, {CNT0}\nbuffer_store_dword v4, v9, s[28:31], s4 offen sc1")
    k(f"{Lz}:")
    k("s_lshl_b32 s4, s2, 13\nbuffer_load_dwordx4 v[52:55], v8, s[40:43], s4 offen")
    k("v_lshrrev_b32 v9, 4, v0\nv_lshlrev_b32 v9, 10, v9\nv_and_b32 v10, 15, v0\nv_lshl_add_u32 v9, v10, 4, v9")
    k(f"s_lshr_b32 s4, s2, 2\ns_lshl_b32 s4, s4, 15\ns_and_b32 s5, s2, 3\ns_lshl_b32 s5, s5, 8\ns_add_u32 s4, s4, s5\ns_lshl_b32 s5, s47, 10\ns_add_u32 m0, s5, {XT}")
    k("buffer_load_dwordx4 v9, s[40:43], s4 offen lds")
    k("s_lshl_b32 s5, s57, 2\ns_add_u32 s74, s74, s5\ns_addc_u32 s75, s75, 0\ns_add_u32 s76, s76, s5\ns_addc_u32 s77, s77, 0\ns_load_dword s46, s[74:75], 0\ns_load_dword s51, s[76:77], 0")
    k("v_and_b32 v9, 255, v0\nv_lshlrev_b32 v9, 1, v9\ns_lshl_b32 s3, s57, 9")
    for i in range(4):
        mk(40, 66 + 2 * i, 131072)
        k(f"buffer_load_ushort v{10+i}, v9, s[40:43], s3 offen")
    k(f"s_mul_i32 s4, s2, {ZERO_BYTES//256}\ns_add_u32 s4, s4, {KV}")
    k(f"v_cmp_gt_u32 vcc, {ZERO_BYTES//4096}, v0\ns_and_saveexec_b64 s[6:7], vcc\nbuffer_store_dwordx4 v[4:7], v8, s[28:31], s4 offen {SC}\ns_mov_b64 exec, s[6:7]")
    wp_loads(k)
    k("v_mov_b32 v56, 0\nv_mov_b32 v57, 0\nv_mov_b32 v58, 0x3f803f80")
    for i in range(4): k(f"v_dot2c_f32_bf16 v56, v{52+i}, v58\nv_dot2c_f32_bf16 v57, v{52+i}, v{52+i}")
    stamp(k, 2, "xrow")
    Lz = k.label("nz")
    k(f"s_cmp_lg_u32 s2, 0\ns_cbranch_scc1 {Lz}\ns_cmp_lg_u32 s47, 3\ns_cbranch_scc1 {Lz}")
    k(f"v_mov_b32 v59, 1\ns_mov_b64 exec, 1\nbuffer_store_dword v59, v4, s[20:23], 0 offen sc1\ns_mov_b64 exec, -1\n{Lz}:")
    k("v_permlane32_swap_b32 v56, v57\nv_add_f32 v56, v56, v57")
    row16_sum(k, 56)
    k("v_mov_b32 v57, v56\nv_permlane16_swap_b32 v56, v57\nv_add_f32 v56, v56, v57")
    k(f"s_lshl_b32 s4, s2, 5\ns_lshl_b32 s5, s47, 2\ns_add_u32 s4, s4, s5\ns_add_u32 s4, s4, {ST1}")
    k("v_lshlrev_b32 v58, 8, v2\ns_mov_b32 exec_lo, 1\ns_mov_b32 exec_hi, 1")
    k(f"buffer_store_dword v56, v58, s[28:31], s4 offen {SC}\ns_mov_b64 exec, -1")
    k("v_mov_b32 v59, v10")
    k("v_lshrrev_b32 v56, 4, v2\nv_bfe_u32 v57, v0, 2, 2\nv_lshl_add_u32 v57, v56, 3, v57\nv_lshlrev_b32 v57, 8, v57\nv_and_b32 v58, 3, v0\nv_lshl_add_u32 v57, v58, 3, v57")
    k(f"s_lshl_b32 s4, s47, 5\ns_add_u32 s4, s4, {XT}\nv_add_u32 v57, s4, v57")
    k("s_barrier")
    k("ds_read_b64_tr_b16 v[52:53], v57\nds_read_b64_tr_b16 v[54:55], v57 offset:1024")
    k("v_and_b32 v58, 15, v0\nv_lshlrev_b32 v58, 6, v58\nv_lshl_add_u32 v58, v56, 4, v58")
    k(f"s_lshl_b32 s4, s2, 13\ns_lshl_b32 s5, s47, 10\ns_add_u32 s4, s4, s5\ns_add_u32 s4, s4, {XB0}")
    k(f"buffer_store_dwordx4 v[52:55], v58, s[28:31], s4 offen {SC}")
    k("v_mov_b32 v61, 0\nbuffer_load_dword v60, v61, s[20:23], 0 offen sc1")
    stamp(k, 3, "xT")
    kgen_tables(k, 46)
    stamp(k, 4, "tables")
    k("s_waitcnt vmcnt(0) lgkmcnt(0)\ns_barrier")
    stamp(k, 5, "bar1")
    Lq = k.label("fq"); Lp = k.label("fp")
    k(f"s_cmp_lg_u32 s47, 2\ns_cbranch_scc1 {Lq}\ns_mov_b32 s5, 0x40000\n{Lp}:\nv_cmp_ne_u32 vcc, 0, v60\ns_cbranch_vccnz {Lq}\ns_sub_u32 s5, s5, 1\ns_cbranch_scc1 {Lq}")
    k(f"buffer_load_dword v60, v61, s[20:23], 0 offen sc1\ns_branch {Lp}\n{Lq}:")
    arrive(k, 2, CNT0)
    L2 = k.label("nm"); L3 = k.label("nw1")
    k(f"s_cmp_ge_u32 s47, 2\ns_cbranch_scc1 {L2}")
    kgen_mfma_scatter(k)
    k(f"{L2}:\ns_cmp_lt_u32 s47, 4\ns_cbranch_scc1 {L3}")
    wp_compute(k)
    k(f"{L3}:")
    stamp(k, 6, "kmfma")
    k("s_waitcnt lgkmcnt(0)\ns_barrier")
    k("v_and_b32 v16, 255, v0\nv_lshrrev_b32 v17, 8, v0")
    k(f"v_lshrrev_b32 v18, 1, v16\nv_lshlrev_b32 v18, 2, v18\nv_mul_u32_u24 v19, 1280, v17\nv_add_u32 v18, v18, v19")
    k(f"v_add_u32 v18, {RC}, v18\nv_and_b32 v19, 1, v0\nv_lshlrev_b32 v19, 4, v19")
    k(f"v_mul_u32_u24 v20, {KI_CH}, v17\nv_lshl_add_u32 v20, v16, 4, v20\nv_add_u32 v21, 1024, v18")
    for i in range(3):
        b = 24 + 10 * i; ar, o = ("v18", 128 * i) if i < 2 else ("v21", 0)
        k(f"ds_read2_b32 {v(b,2)}, {ar} offset0:{o} offset1:{o+1}\nds_read2_b32 {v(b+2,2)}, {ar} offset0:{o+2} offset1:{o+3}\nds_read_b32 v{b+4}, {ar} offset:{4*o+16}")
    for i in range(3):
        b = 24 + 10 * i
        for j in range(4): k(f"v_alignbit_b32 v{b+6+j}, v{b+j+1}, v{b+j}, v19")
        if i == 2: k("v_cmp_gt_u32 vcc, 88, v16\ns_and_saveexec_b64 s[6:7], vcc")
        k(f"ds_write_b128 v20, {v(b+6,4)} offset:{L_KI+4096*i}")
    k("s_mov_b64 exec, s[6:7]")
    zero_upads(k); zero_wpads(k)
    stamp(k, 7, "slots")
    poll(k, 3, CNT0)
    k("s_waitcnt vmcnt(0) lgkmcnt(0)\ns_barrier")
    stamp(k, 8, "B0")
    arrive(k, 3, CNTW)
    Lc = k.label("ncs")
    k(f"s_cmp_lt_u32 s47, 4\ns_cbranch_scc1 {Lc}\nv_lshlrev_b32 v5, 2, v2\ns_mov_b32 exec_hi, 0\nbuffer_atomic_add_f32 v240, v5, s[28:31], s61 offen\ns_mov_b64 exec, -1\n{Lc}:")
    k("v_lshlrev_b32 v8, 4, v0")
    for i in range(3): k(f"ds_read_b128 {v(KP+4*i,4)}, v8 offset:{L_KI+8192*i}")

def w_preload(k):
    k(f"s_lshr_b32 s4, s2, 4\ns_mul_i32 s4, s4, 98304\ns_mul_i32 s5, s49, 24576\ns_add_u32 s4, s4, s5\ns_add_u32 s4, s4, {WQ}")
    for i in range(24):
        if i % 4 == 0: k(f"s_add_u32 m0, s5, {L_W+1024*i}")
        k(f"buffer_load_dwordx4 v3, s[28:31], s4 offen offset:{1024*(i%4)} {SC} lds")
        if i % 4 == 3 and i < 23: k("s_add_u32 s4, s4, 4096")

PRIO1 = int(os.environ.get("PRIO1", "1"))
def conv(k):
    k("v_lshlrev_b32 v8, 4, v0\nv_lshrrev_b32 v9, 3, v0")
    k("v_lshlrev_b32 v10, 15, v9\nv_and_b32 v11, 7, v0\nv_lshl_add_u32 v10, v11, 3, v10")
    k("s_lshl_b32 s37, s57, 7\ns_add_u32 s40, s37, s52\ns_add_u32 s41, s40, 0x200000\ns_add_u32 s42, s53, 8192")
    k(f"buffer_load_dwordx2 v[24:25], v10, s[28:31], s40 offen {SC}\nbuffer_load_dwordx2 v[26:27], v10, s[28:31], s40 offen offset:64 {SC}")
    k(f"buffer_load_dwordx4 v[16:19], v8, s[28:31], s53 offen {SC}\nbuffer_load_dwordx4 v[20:23], v8, s[28:31], s42 offen {SC}")
    k(f"v_bfe_u32 v12, v0, 1, 2\nv_mul_u32_u24 v12, {UQ}, v12\nv_lshl_add_u32 v12, v9, 4, v12\nv_and_b32 v13, 1, v0\nv_lshl_add_u32 v12, v13, 3, v12")
    k(f"v_mov_b32 v14, {L_KI+KI_K1024}\nds_read_b32 v62, v14\nds_read_b32 v63, v14 offset:{KI_CH}")
    Lh = k.label("h0"); Lj = k.label("j0")
    k(f"s_cmp_ge_u32 s47, 4\ns_cbranch_scc1 {Lh}")
    mfma_addr(k)
    k(f"s_branch {Lj}\n{Lh}:")
    k(f"v_and_b32 v54, 127, v0\ns_lshr_b32 s4, s49, 1\ns_mul_i32 s5, s4, {UC}\ns_mul_i32 s6, s4, {WC}\ns_add_u32 s6, s6, {WIN+64}")
    for i, d in enumerate((-1, 0, 1)):
        k(f"v_add_u32 v48, {72+d}, v54\nv_and_b32 v49, 3, v48\nv_mul_u32_u24 v49, {UQ}, v49\nv_lshrrev_b32 v48, 2, v48\nv_lshl_add_u32 v48, v48, 4, v49\nv_add_u32 v{50+i}, s5, v48")
    k("v_lshl_add_u32 v53, v54, 4, s6")
    k(f"{Lj}:")
    k(f"s_mov_b32 s4, {f32(1/512)}\nv_mov_b32 v14, {f32(1e-5)}")
    for c in range(2):
        for i in range(2): k(f"v_lshlrev_b32 v{28+4*c+2*i}, 16, v{24+2*c+i}\nv_and_b32 v{29+4*c+2*i}, 0xffff0000, v{24+2*c+i}")
    for i in range(4): k(f"v_mul_f32 v{16+i}, s4, v{16+i}")
    stamp(k, 10, "cv_ld")
    for i in range(4): k(f"v_fma_f32 v{20+i}, s4, v{20+i}, v14")
    for i in range(4): k(f"v_fma_f32 v{20+i}, -v{16+i}, v{16+i}, v{20+i}")
    for i in range(4): k(f"v_max_f32 v{20+i}, v{20+i}, v14")
    for i in range(4): k(f"v_rsq_f32 v{20+i}, v{20+i}")
    k("s_lshl_b32 s4, s51, 16\ns_and_b32 s5, s51, 0xffff0000")
    for c in range(2):
        for i in range(4): k(f"v_sub_f32 v{36+4*c+i}, v{28+4*c+i}, v{16+i}")
    for c in range(2):
        for i in range(4): k(f"v_mul_f32 v{36+4*c+i}, v{36+4*c+i}, v{20+i}")
        k(f"v_cvt_pk_bf16_f32 v{44+2*c}, v{36+4*c}, v{37+4*c}\nv_cvt_pk_bf16_f32 v{45+2*c}, v{38+4*c}, v{39+4*c}")
        k(f"ds_write_b64 v12, {v(44+2*c,2)} offset:{U4+c*UC+18*16}")
    for c in range(2):
        for i in range(4): k(f"v_fma_f32 v{28+4*c+i}, v{36+4*c+i}, s{4+c}, v{28+4*c+i}")
    k(f"v_mul_u32_u24 v12, {68*16}, v11\nv_lshl_add_u32 v12, v9, 4, v12")
    k(f"v_lshlrev_b32 v13, 3, v0\nv_subrev_u32 v13, {2048-64}, v13\nv_max_i32 v13, 0, v13")
    k("s_waitcnt lgkmcnt(0)\ns_barrier")
    stamp(k, 11, "cv_u")
    def eterm(part=None):
        if part in (None, 0): k(f"ds_read_b64 v[40:41], v13 offset:{WIN+WOFF[4]}\nds_read_b64 v[42:43], v13 offset:{WIN+WC+WOFF[4]}")
        for c in range(2):
            if part is not None and part != c + 1: continue
            for i in range(2):
                k(f"v_lshlrev_b32 v38, 16, v{40+2*c+i}\nv_and_b32 v39, 0xffff0000, v{40+2*c+i}")
                k(f"v_fmac_f32 v{28+4*c+2*i}, v38, v{62+c}\nv_fmac_f32 v{29+4*c+2*i}, v39, v{62+c}")
    Lh = k.label("help"); Le = k.label("epi")
    k(f"s_cmp_ge_u32 s47, 4\ns_cbranch_scc1 {Lh}")
    mfma_part(k, eterm)
    k(f"s_branch {Le}\n{Lh}:")
    if PRIO1: k(f"s_setprio {PRIO1}")
    windows(k, 0)
    stamp(k, 12, "near/win")
    Lc = k.label("cc"); Ln = k.label("nwl"); Lo = k.label("odd"); Ld = k.label("dd")
    k(f"s_cmp_lg_u32 s50, 0\ns_cbranch_scc1 {Ln}")
    poll(k, 7, CNTW)
    k(f"{Ln}:\ns_waitcnt lgkmcnt(0)\ns_setprio 2\ns_barrier\ns_bitcmp1_b32 s47, 0\ns_cbranch_scc1 {Lo}")
    windows(k, 1)
    k(f"s_waitcnt lgkmcnt(0)\ns_barrier\n{Lo}:\ns_cmp_lg_u32 s50, 0\ns_cbranch_scc1 {Lc}")
    w_preload(k)
    k(f"{Lc}:\ns_bitcmp0_b32 s47, 0\ns_cbranch_scc1 {Ld}\ns_barrier\n{Ld}:\ns_setprio 0")
    eterm()
    k(f"{Le}:")
    stamp(k, 13, "midfar")
    k("s_waitcnt lgkmcnt(0)\ns_barrier")
    for i in range(4): k(f"ds_read_b128 {v(48+4*i,4)}, v12 offset:{YB+i*YS}")
    for c in range(2):
        for h in range(2):
            for i in range(0, 4, 2): k(f"v_pk_add_f32 {v(28+4*c+i,2)}, {v(28+4*c+i,2)}, {v(48+8*c+4*h+i,2)}")
        k(f"v_cvt_pk_bf16_f32 v{44+2*c}, v{28+4*c}, v{29+4*c}\nv_cvt_pk_bf16_f32 v{45+2*c}, v{30+4*c}, v{31+4*c}")
        k(f"buffer_store_dwordx2 {v(44+2*c,2)}, v10, s[28:31], s41 offen offset:{64*c} {SC}")
    stamp(k, 14, "cv_st")

def windows(k, ps):
    b = 64
    if ps == 0:
        for p in range(2):
            k(f"ds_read_b64 {v(b+8*p,2)}, v50 offset:{U4+512*p+8}\nds_read_b128 {v(b+8*p+2,4)}, v51 offset:{U4+512*p}\nds_read_b64 {v(b+8*p+6,2)}, v52 offset:{U4+512*p}")
    b += 8 * ps
    P = 80
    lo_i, hi_i = (0, 16) if ps == 0 else (2, 14)
    for i in range(lo_i // 2, hi_i // 2): k(f"v_lshlrev_b32 v{P+2*i}, 16, v{b+i}\nv_and_b32 v{P+1+2*i}, 0xffff0000, v{b+i}")
    for i in range(lo_i + 1, hi_i): k(f"v_add_f32 v{P+i}, v{P+i}, v{P-1+i}")
    wins = ((-2, 2), (-1, 1), (-4, 4), (-3, 3), (-4, 2))
    for ai, (lo, hi) in enumerate(wins if ps == 0 else wins[:2]):
        t = 96 + 8 * (ai % 2); o = 112 + 4 * (ai % 2)
        src = []
        for i in range(8):
            h_ = i + 4 + hi; l_ = i + 4 + lo - 1
            if l_ < lo_i: src.append(P + h_)
            else: k(f"v_sub_f32 v{t+i}, v{P+h_}, v{P+l_}"); src.append(t + i)
        for i in range(4): k(f"v_cvt_pk_bf16_f32 v{o+i}, v{src[2*i]}, v{src[2*i+1]}")
        k(f"ds_write_b128 v53, {v(o,4)} offset:{WOFF[ai]+2048*ps}")
    if ps == 0:
        k(f"v_cmp_eq_u32 vcc, 0, v54\ns_and_saveexec_b64 s[6:7], vcc\nv_subrev_u32 v48, 8, v53")
        k(f"v_cvt_pk_bf16_f32 v96, v{P+4}, v{P+5}\nv_cvt_pk_bf16_f32 v97, v{P+6}, v{P+7}\nv_cvt_pk_bf16_f32 v98, v{P+3}, v{P+4}\nv_cvt_pk_bf16_f32 v99, v{P+5}, v{P+6}")
        k(f"ds_write_b32 v48, v96 offset:{WOFF[0]+4}\nds_write_b32 v48, v98 offset:{WOFF[1]+4}\nds_write_b64 v48, v[96:97] offset:{WOFF[2]}")
        k(f"ds_write_b64 v48, v[98:99] offset:{WOFF[3]}\nds_write_b32 v48, v96 offset:{WOFF[4]+4}\ns_mov_b64 exec, s[6:7]")

def mfma_addr(k):
    k("v_and_b32 v48, 31, v0\nv_bfe_u32 v49, v0, 5, 1\ns_lshr_b32 s4, s47, 1\ns_and_b32 s5, s47, 1")
    k("v_lshlrev_b32 v50, 3, v49\nv_sub_u32 v50, v50, v48\nv_lshlrev_b32 v50, 4, v50")
    k(f"s_mul_i32 s6, s4, {KI_CH}\ns_lshl_b32 s7, s5, 8\ns_add_u32 s7, s7, s6\ns_add_u32 s7, s7, {L_KI+16*31}\nv_add_u32 v50, s7, v50")
    k(f"v_mul_u32_u24 v51, {UQ}, v49\nv_lshl_add_u32 v51, v48, 4, v51")
    k(f"s_mul_i32 s7, s4, {UC}\ns_mul_i32 s38, s5, {2*UQ}\ns_add_u32 s7, s7, s38\ns_add_u32 s7, s7, {U4+16}\nv_add_u32 v51, s7, v51")
    k("v_bfe_u32 v52, v0, 2, 2\nv_and_b32 v53, 3, v0\nv_bfe_u32 v54, v0, 4, 1")
    k("v_lshlrev_b32 v55, 3, v53\nv_lshl_add_u32 v55, v54, 5, v55")
    k(f"v_and_b32 v56, 1, v52\nv_mul_u32_u24 v53, {WOFF[1]}, v56\nv_mul_u32_u24 v54, {WOFF[3]-WOFF[2]}, v56")
    k("v_lshl_add_u32 v56, v49, 3, v52")
    k(f"s_mul_i32 s7, s4, {WC}\ns_add_u32 s7, s7, {WIN}")
    k("s_lshl_b32 s38, s5, 7\ns_add_u32 s38, s38, s7\nv_lshl_add_u32 v57, v56, 3, v55\nv_add3_u32 v57, s38, v57, v53")
    k(f"s_lshl_b32 s38, s5, 8\ns_add_u32 s38, s38, s7\ns_add_u32 s38, s38, {WOFF[2]}\nv_lshl_add_u32 v58, v56, 4, v55\nv_add3_u32 v58, s38, v58, v54")
    k("v_sub_u32 v59, v49, v48\nv_lshlrev_b32 v59, 4, v59")
    k(f"s_lshl_b32 s38, s5, 5\ns_add_u32 s38, s38, s6\ns_add_u32 s39, s38, {L_KI+KI_MID+496}\nv_add_u32 v59, s39, v59")
    k("v_lshlrev_b32 v60, 1, v49\nv_sub_u32 v60, v60, v48\nv_lshlrev_b32 v60, 3, v60")
    k(f"s_add_u32 s39, s38, {L_KI+KI_FAR+248}\nv_add_u32 v60, s39, v60")
    k(f"v_mul_u32_u24 v61, {68*16}, v49\nv_lshl_add_u32 v61, v48, 4, v61\ns_mul_i32 s7, s47, {YS}\ns_add_u32 s7, s7, {YB}\nv_add_u32 v61, s7, v61")
    for m in range(18): k(f"ds_read_b128 {v(NA+4*m,4)}, v50 offset:{(17-m)*512}")

A0, A1 = 64, 80
NA = 168
FB = 96
def mfma_part(k, eterm):
    NB = 14
    steps = [("m", i) for i in range(8)] + [("f", i) for i in range(4)] + [("m", i) for i in range(8, 12)]
    def breg(n): return 152 + 4 * (n - 12) if n >= 12 else NA + 4 * n
    def rdB(n):
        t, i = steps[n]; b = breg(n)
        if t == "m": return [f"ds_read_b128 {v(b,4)}, v59 offset:{64*i}"]
        return [f"ds_read_b64 {v(b,2)}, v60 offset:{64*i}\nds_read_b64 {v(b+2,2)}, v60 offset:{64*i+8}"]
    nxt = [0]
    def rd_near():
        e = nxt[0]; nxt[0] += 1; m, g = divmod(e, 2)
        k(f"ds_read_b128 {v(FB+4*(e%NB),4)}, v51 offset:{(17-m)*16+512*g}")
    extra = [x for n in range(12, 16) for x in rdB(n)] + [x for n in range(12) for x in rdB(n)]
    for _ in range(4): rd_near()
    for e in range(36):
        m, g = divmod(e, 2); A = (A0, A1)[g]
        k(f"v_mfma_f32_32x32x16_bf16 {v(A,16)}, {v(NA+4*m,4)}, {v(FB+4*(e%NB),4)}, {'0' if m==0 else v(A,16)}")
        n = 0
        while n < 2 and nxt[0] < 36 and nxt[0] - e <= 10: rd_near(); n += 1
        while n < 2 and extra and e >= 14 and (len(extra) > 12 or 12 - len(extra) < m): k(extra.pop(0)); n += 1
    assert not extra
    stamp(k, 12, "near/win")
    k("s_waitcnt lgkmcnt(0)\ns_barrier")
    def rdA(n):
        t, i = steps[n]; b = FB + 4 * (n % 14)
        if t == "m": k(f"ds_read_b64_tr_b16 {v(b,2)}, v57 offset:{256*i}\nds_read_b64_tr_b16 {v(b+2,2)}, v57 offset:{256*i+32}")
        else: k(f"ds_read_b64_tr_b16 {v(b,2)}, v58 offset:{512*i}\nds_read_b64_tr_b16 {v(b+2,2)}, v58 offset:{512*i+64}")
    na = [0]
    def more(cnt, lim):
        for _ in range(cnt):
            if na[0] < lim: rdA(na[0]); na[0] += 1
    more(2, 12)
    for n, (t, i) in enumerate(steps):
        b = FB + 4 * (n % 14)
        if t == "m" and i < 4:
            k(f"v_mfma_f32_32x32x16_bf16 {v(A0,16)}, {v(b,4)}, {v(152+4*i,4)}, {v(A0,16)}")
            more(1, 12)
        k(f"v_mfma_f32_32x32x16_bf16 {v(A1,16)}, {v(b,4)}, {v(breg(n),4)}, {v(A1,16)}")
        if n == 8: k("s_barrier")
        more(1 if n < 8 else 2, 12 if n < 8 else 16)
        if n == 5: eterm(0)
        if n in (6, 7): eterm(n - 5)
        if 10 <= n < 14: k(f"ds_write_b128 v61, {v(A0+4*(n-10),4)} offset:{(n-10)*2*68*16}")
    for q in range(4): k(f"ds_write_b128 v61, {v(A1+4*q,4)} offset:{q*2*68*16+512}")

PK = 0; VF = 4096; RB = 6144
def p2_ids(k):
    k("s_and_b32 s3, s2, 7\ns_lshl_b32 s3, s3, 1\ns_bfe_u32 s4, s2, 0x10003\ns_add_u32 s32, s3, s4\ns_lshr_b32 s33, s2, 4")
    k("s_and_b32 s35, s33, 7\ns_lshl_b32 s36, s32, 2\ns_add_u32 s36, s36, s49")

def minmax(k, A, T):
    mx, mn = T + 32, T + 33
    for i in range(5): k(f"v_max3_f32 v{T+i}, v{A+3*i}, v{A+3*i+1}, v{A+3*i+2}\nv_min3_f32 v{T+8+i}, v{A+3*i}, v{A+3*i+1}, v{A+3*i+2}")
    k(f"v_max3_f32 v{T}, v{T}, v{T+1}, v{T+2}\nv_min3_f32 v{T+8}, v{T+8}, v{T+9}, v{T+10}")
    k(f"v_max3_f32 v{T+3}, v{T+3}, v{T+4}, v{A+15}\nv_min3_f32 v{T+11}, v{T+11}, v{T+12}, v{A+15}")
    k(f"v_max_f32 v{mx}, v{T}, v{T+3}\nv_min_f32 v{mn}, v{T+8}, v{T+11}")
QBAR = int(os.environ.get("QBAR", "3")); QPRIO = int(os.environ.get("QPRIO", "1"))
def softmax(k, A, sc, T, O, bar=None):
    mx, mn, bp, bn = T + 32, T + 33, T + 34, T + 36
    k(f"v_mul_f32 v{bp}, v{mx}, v{sc}\nv_mul_f32 v{bn}, v{mn}, v{sc}")
    for i in range(0, 16, 2):
        k(f"v_pk_fma_f32 {v(T+i,2)}, {v(A+i,2)}, {v(sc,2)}, {v(bp,2)} op_sel:[0,0,0] op_sel_hi:[1,0,0] neg_lo:[0,0,1] neg_hi:[0,0,1]")
    for i in range(0, 16, 2):
        k(f"v_pk_fma_f32 {v(T+16+i,2)}, {v(A+i,2)}, {v(sc,2)}, {v(bn,2)} op_sel:[0,0,0] op_sel_hi:[1,0,0] neg_lo:[1,0,0] neg_hi:[1,0,0]")
    for i in range(32): k(f"v_exp_f32 v{T+i}, v{T+i}")
    if bar == 1: k("s_barrier")
    for i in range(8): k(f"v_pk_add_f32 {v(A+2*i,2)}, {v(T+4*i,2)}, {v(T+4*i+2,2)}")
    for i in range(4): k(f"v_pk_add_f32 {v(A+4*i,2)}, {v(A+4*i,2)}, {v(A+4*i+2,2)}")
    k(f"v_pk_add_f32 {v(bp,2)}, {v(A,2)}, {v(A+4,2)}\nv_pk_add_f32 {v(bn,2)}, {v(A+8,2)}, {v(A+12,2)}")
    k(f"v_add_f32 v{bp}, v{bp}, v{bp+1}\nv_add_f32 v{bn}, v{bn}, v{bn+1}")
    k(f"v_rcp_f32 v{bp}, v{bp}\nv_rcp_f32 v{bn}, v{bn}")
    for h, acc in ((0, bp), (1, bn)):
        for i in range(0, 16, 2):
            k(f"v_pk_mul_f32 {v(T+16*h+i,2)}, {v(T+16*h+i,2)}, {v(acc,2)} op_sel:[0,0] op_sel_hi:[1,0]")
    if bar == 2: k("s_barrier")
    for i in range(16): k(f"v_cvt_pk_bf16_f32 v{O+i}, v{T+2*i}, v{T+2*i+1}")

WF3 = 132
def p3_wo_base(k):
    k(f"s_lshr_b32 s43, s2, 6\ns_lshl_b32 s43, s43, 2\ns_add_u32 s43, s43, s49\ns_lshl_b32 s43, s43, 15\ns_lshl_b32 s5, s48, 14\ns_add_u32 s43, s43, s5\ns_add_u32 s43, s43, {WO}")
def p3_wo_load(k, i):
    k(f"buffer_load_dwordx4 {v(WF3+4*i,4)}, v3, s[28:31], s43 offen offset:{1024*(i%4)} {SC}")
    if i % 4 == 3 and i < 15: k("s_add_u32 s43, s43, 4096")

QX = 8192
LCT = QX + 4352
def p2_setup(k):
    p2_ids(k); p3_wo_base(k)
    k("s_lshl_b32 s37, s36, 15\ns_add_u32 s37, s37, s52\ns_add_u32 s37, s37, 0x200000\ns_lshl_b32 s42, s49, 14")
    k("v_bfe_u32 v9, v0, 5, 1\nv_and_b32 v8, 31, v0\nv_add_u32 v220, s42, v3\nv_lshl_add_u32 v221, v2, 2, s42")
    L = k.label("hs"); Le = k.label("hse")
    k(f"s_cmp_ge_u32 s47, 4\ns_cbranch_scc1 {L}")
    for i in range(16): p3_wo_load(k, i)
    k("v_bfe_u32 v6, v0, 2, 2\nv_lshl_add_u32 v6, v9, 2, v6\nv_lshlrev_b32 v6, 6, v6")
    k("v_bfe_u32 v7, v0, 4, 1\nv_lshl_add_u32 v6, v7, 5, v6\nv_and_b32 v7, 3, v0\nv_lshl_add_u32 v6, v7, 3, v6\nv_add_u32 v6, s42, v6")
    k("s_and_b32 s5, s49, 1\ns_lshr_b32 s6, s49, 1\nv_and_b32 v14, 15, v0\nv_bfe_u32 v15, v0, 4, 1")
    k(f"s_lshl_b32 s4, s5, 8\ns_add_u32 s4, s4, {VF}\nv_lshl_add_u32 v222, v14, 4, s4\nv_lshl_add_u32 v222, v15, 9, v222\nv_lshl_add_u32 v222, v9, 10, v222")
    k("v_bfe_u32 v11, v0, 2, 2\nv_lshl_add_u32 v11, v15, 2, v11")
    k("s_lshl_b32 s4, s6, 1\nv_bfe_u32 v13, v0, 1, 1\nv_or_b32 v13, s4, v13\nv_lshrrev_b32 v15, 1, v11\nv_xor_b32 v13, v13, v15")
    k("v_lshl_add_u32 v11, v9, 4, v11\nv_lshlrev_b32 v11, 6, v11\nv_lshl_add_u32 v11, v13, 4, v11\nv_and_b32 v13, 1, v0\nv_lshl_add_u32 v11, v13, 3, v11")
    k(f"s_lshl_b32 s4, s5, 11\ns_add_u32 s4, s4, {PK}\nv_add_u32 v223, s4, v11")
    k("s_lshl_b32 s4, s33, 1\ns_add_u32 s4, s4, s5\ns_lshl_b32 s6, s6, 6\ns_add_u32 s6, s6, s54\ns_lshl_b32 s38, s4, 11\ns_add_u32 s38, s38, s6\ns_lshl_b32 s4, s4, 7\ns_add_u32 s39, s6, s4\ns_add_u32 s39, s39, 65536")
    k("v_lshrrev_b32 v12, 4, v2\nv_lshlrev_b32 v12, 9, v12\nv_lshl_add_u32 v224, v14, 2, v12")
    k("v_lshl_add_u32 v11, v9, 5, v8\nv_lshl_add_u32 v11, v11, 6, s42\nv_bfe_u32 v13, v0, 1, 2\nv_lshl_add_u32 v225, v13, 4, v11")
    for j in range(1, 4): k(f"v_xor_b32 v{225+j}, {16*j}, v225")
    k(f"s_add_u32 s4, s42, {RB}\nv_lshl_add_u32 v229, v8, 2, s4\nv_lshl_add_u32 v7, v9, 4, s4")
    for r in range(232, 236): k(f"v_mov_b32 v{r}, 0x3f803f80")
    k("v_mov_b32 v12, 0\nv_mov_b32 v13, 0")
    k(f"s_branch {Le}\n{L}:\nv_mov_b32 v224, 0")
    k("v_lshlrev_b32 v11, 4, v8\nv_lshl_add_u32 v11, v9, 11, v11")
    k("s_lshl_b32 s38, s36, 16\ns_lshl_b32 s5, s33, 12\ns_add_u32 s38, s38, s5\ns_add_u32 s38, s38, s55\ns_lshl_b32 s39, s36, 8\ns_add_u32 s39, s39, s62\ns_lshl_b32 s5, s33, 2\ns_add_u32 s39, s39, s5")
    k(f"{Le}:")

CSB = [208, 212, 216, 236]
def p2_mean(k, AQ, A):
    k(f"v_mov_b32 v240, v{AQ+15}\nv_mov_b32 v241, v{AQ+15}\nv_mov_b32 v13, v12\ns_mov_b32 s4, {f32(1/512)}")
    k("v_permlane32_swap_b32 v240, v241\nv_permlane32_swap_b32 v12, v13\nv_mul_f32 v240, s4, v240\nv_add_f32 v12, v12, v13")
    for i in range(0, 16, 2):
        k(f"v_pk_fma_f32 {v(A+i,2)}, {v(CSB[i//4]+i%4,2)}, v[240:241], {v(A+i,2)} op_sel:[0,0,0] op_sel_hi:[1,0,1] neg_lo:[0,1,0] neg_hi:[0,1,0]")
def p2_rstd(k):
    k(f"v_mov_b32 v15, {f32(1e-5)}\nv_fma_f32 v12, s4, v12, v15")
    k(f"v_fma_f32 v12, -v240, v240, v12\nv_max_f32 v12, v12, v15\nv_rsq_f32 v12, v12\nv_mul_f32 v14, {LOG2E}, v12")
def cs_loads(k, section):
    k(f"s_lshl_b32 s4, s33, 7\ns_add_u32 s4, s4, {CS+2048*section}\nv_lshlrev_b32 v4, 4, v9")
    for q in range(4): k(f"buffer_load_dwordx4 {v(CSB[q],4)}, v4, s[28:31], s4 offen offset:{32*q} {SC}")

def p2(k):
    LH = k.label("H"); LE = k.label("p2e")
    k(f"s_cmp_ge_u32 s47, 4\ns_cbranch_scc1 {LH}")
    def dma(j):
        n, i = divmod(j, 4)
        if i == 0: k(f"s_add_u32 s44, s35, {n}\ns_and_b32 s44, s44, 7\ns_lshl_b32 s44, s44, 12\ns_add_u32 m0, s42, {(n%4)*4096}\ns_add_u32 s44, s44, s37")
        k(f"buffer_load_dwordx4 v3, s[28:31], s44 offen offset:{1024*i} {SC} lds")
    AQ, AK, AV = 16, 32, 48
    XF = 64; WB = [96, 108, 120, 196]; NW = 4; LA = 3
    issued = [16]
    def rdw(j, ts):
        n, ks = divmod(j, 4)
        wa = f"v{10+(n%2)}"
        if ks == 0 and 0 in ts: k(f"s_add_u32 s45, s35, {n}\ns_and_b32 s45, s45, 7\ns_mul_i32 s45, s45, 12288\ns_add_u32 s45, s45, {L_W}\nv_add_u32 {wa}, s45, v3")
        for t in ts: k(f"ds_read_b128 {v(WB[j%NW]+4*t,4)}, {wa} offset:{ks*3072+t*1024}")
    def rdx(j):
        xb = XF + 4 * (j % 8); so = (j % 16) * 1024
        k(f"s_waitcnt vmcnt({issued[0]-1-j})")
        k(f"ds_read_b64_tr_b16 {v(xb,2)}, v6 offset:{so}\nds_read_b64_tr_b16 {v(xb+2,2)}, v6 offset:{so+512}")
    for j in range(16): dma(j)
    for j in range(LA): rdw(j, (0, 1, 2))
    for j in range(LA): rdx(j)
    stamp(k, 20, "p2_x0")
    for j in range(32):
        xb = XF + 4 * (j % 8); wb = WB[j % NW]
        k(f"v_mfma_f32_32x32x16_bf16 {v(AQ,16)}, {v(wb,4)}, {v(xb,4)}, {'0' if j==0 else v(AQ,16)}")
        if j + LA < 32: rdw(j + LA, (0, 1))
        if j == 16:
            k("s_barrier")
            cs_loads(k, 1); k(f"v_lshlrev_b32 v4, 2, v8\nbuffer_load_dword v230, v4, s[28:31], s4 offen offset:2048 {SC}"); issued[0] += 5
        k(f"v_mfma_f32_32x32x16_bf16 {v(AK,16)}, {v(wb+4,4)}, {v(xb,4)}, {'0' if j==0 else v(AK,16)}")
        if j + LA < 32: rdw(j + LA, (2,))
        if j + 16 < 32: dma(j + 16); issued[0] += 1
        k(f"v_mfma_f32_32x32x16_bf16 {v(AV,16)}, {v(xb,4)}, {v(wb+8,4)}, {'0' if j==0 else v(AV,16)}")
        if j + LA < 32: rdx(j + LA)
        if j == 31:
            for c in range(4): k(f"ds_write_b128 v220, {v(AQ+4*c,4)} offset:{QX+1024*c}")
        if j % 4 == 3:
            for i in range(16):
                r = XF + 4 * ((j - 3) % 8) + i
                k(f"v_dot2c_f32_bf16 v{12+(i%2)}, v{r}, v{r}")
        if j == 15: stamp(k, 21, "p2_half")
    T = 64; O = 104
    k(f"v_add_f32 v12, v12, v13\nds_write_b32 v221, v12 offset:{QX+4096}\nv_mov_b32 v4, {LCT}\nv_mov_b32 v5, 0\nds_write_b32 v221, v5 offset:{LCT}")
    stamp(k, 22, "p2_main")
    p2_mean(k, AQ, AK)
    k("s_waitcnt lgkmcnt(0)\ns_barrier")
    p2_rstd(k)
    k(f"v_mul_f32 v13, v12, v240\nds_write2_b32 v229, v12, v13 offset0:0 offset1:32")
    for q in range(4): k(f"ds_read_b128 {v(AQ+4*q,4)}, v7 offset:{32*q}\nds_read_b128 {v(196+4*q,4)}, v7 offset:{128+32*q}")
    minmax(k, AK, T)
    softmax(k, AK, 14, T, O)
    for j in range(4): k(f"ds_write_b128 v{225+j}, {v(O+4*j,4)} offset:{PK}")
    for i in range(0, 16, 2): k(f"v_pk_mul_f32 {v(AV+i,2)}, {v(AV+i,2)}, {v(AQ+i,2)}")
    for i in range(0, 16, 2): k(f"v_pk_fma_f32 {v(AV+i,2)}, {v(196+i,2)}, v[230:231], {v(AV+i,2)} op_sel:[0,0,0] op_sel_hi:[1,0,1] neg_lo:[0,1,0] neg_hi:[0,1,0]")
    for i in range(8): k(f"v_cvt_pk_bf16_f32 v{120+i}, v{AV+2*i}, v{AV+2*i+1}")
    k(f"ds_write_b128 v220, v[120:123] offset:{VF}\nds_write_b128 v220, v[124:127] offset:{VF+1024}")
    stamp(k, 24, "p2_sm")
    k("s_waitcnt lgkmcnt(0)\ns_barrier")
    for i in range(4):
        k(f"ds_read_b64_tr_b16 {v(64+4*i,2)}, v223 offset:{16384*i}\nds_read_b64_tr_b16 {v(66+4*i,2)}, v223 offset:{16384*i+512}\nds_read_b128 {v(48+4*i,4)}, v222 offset:{16384*i}")
    for i in range(4):
        k(f"v_mfma_f32_16x16x32_bf16 v[20:23], v[232:235], {v(64+4*i,4)}, {'0' if i==0 else 'v[20:23]'}")
        k(f"v_mfma_f32_16x16x32_bf16 v[16:19], {v(48+4*i,4)}, {v(64+4*i,4)}, {'0' if i==0 else 'v[16:19]'}")
    for r in range(4): k(f"buffer_atomic_add_f32 v{16+r}, v224, s[28:31], s38 offen offset:{r*128}")
    k(f"s_mov_b64 exec, 0xffff\nbuffer_atomic_add_f32 v20, v224, s[28:31], s39 offen\ns_mov_b64 exec, 1\nv_mov_b32 v5, 1")
    stamp(k, 25, "p2_out")
    k("s_waitcnt vmcnt(0)\nds_add_rtn_u32 v5, v4, v5\nv_readfirstlane_b32 s4, v5\ns_mov_b64 exec, -1")
    stamp(k, 26, "p2_drain"); stamp(k, 59, "rt_p2")
    k(f"s_cmp_lg_u32 s4, 3\ns_cbranch_scc1 {LE}")
    arrive(k, "s47")
    k(f"s_branch {LE}")
    k(f"{LH}:\ns_barrier")
    cs_loads(k, 0)
    for i in range(16): p3_wo_load(k, i)
    k(f"s_setprio {QPRIO}\ns_barrier")
    k(f"ds_read_b32 v12, v221 offset:{QX+4096}")
    for c in (3, 0, 1, 2): k(f"ds_read_b128 {v(AQ+4*c,4)}, v220 offset:{QX+1024*c}")
    p2_mean(k, AQ, AQ); p2_rstd(k)
    k(f"s_mov_b32 exec_hi, 0\nv_mov_b32 v{AQ+15}, 0\ns_mov_b64 exec, -1")
    minmax(k, AQ, T)
    softmax(k, AQ, 14, T, O, QBAR)
    for j in range(4): k(f"buffer_store_dwordx4 {v(O+4*j,4)}, v11, s[28:31], s38 offen offset:{512*j} {SC}")
    stamp(k, 25, "p2_out")
    if QBAR == 3: k("s_barrier")
    k("s_setprio 0\nv_mov_b32 v4, 1\nv_mov_b32 v5, 0\ns_waitcnt vmcnt(0)")
    k(f"s_mov_b64 exec, 1\nbuffer_store_dword v4, v5, s[28:31], s39 offen sc1\ns_mov_b64 exec, -1")
    stamp(k, 26, "p2_drain")
    k(f"{LE}:")

OB = 0; HS = 17 * 80; KB = 32768; XR = KB + 16 * HS; EX = KB; TR = 0
assert XR + 8192 <= 65536
PH = 100
def p3_setup(k):
    k("s_and_b32 s3, s2, 7\ns_lshl_b32 s3, s3, 3\ns_bfe_u32 s4, s2, 0x30003\ns_add_u32 s32, s3, s4\ns_lshr_b32 s33, s2, 6")
    k("s_lshl_b32 s35, s47, 13\ns_add_u32 s36, s35, s54")
    k("s_lshl_b32 s37, s47, 9\ns_add_u32 s37, s37, s54\ns_add_u32 s37, s37, 65536")
    k("s_lshl_b32 s42, s32, 16\ns_add_u32 s42, s42, s35\ns_add_u32 s42, s42, s55")
    k("s_lshl_b32 s44, s32, 15\ns_lshl_b32 s45, s33, 13\ns_add_u32 s44, s44, s45\ns_add_u32 s44, s44, s52\ns_add_u32 s44, s44, 0x200000")
    k("s_lshl_b32 s45, s47, 10\ns_add_u32 s46, s44, s45")
    k(f"s_add_u32 m0, s45, {XR}\nv_lshlrev_b32 v12, 3, v2")
    k(f"s_mul_i32 s6, s47, {2*HS}\ns_add_u32 s6, s6, {KB}")
    k("v_lshrrev_b32 v13, 3, v2\nv_mul_u32_u24 v13, 80, v13\nv_and_b32 v6, 7, v0\nv_lshl_add_u32 v13, v6, 3, v13\nv_add_u32 v13, s6, v13")
    k("v_and_b32 v7, 15, v0\nv_lshl_add_u32 v6, v7, 2, s6")
    k("v_and_b32 v9, 31, v0\nv_bfe_u32 v10, v0, 5, 1\nv_min_u32 v7, 16, v9\nv_mul_u32_u24 v7, 80, v7\nv_lshl_add_u32 v7, v10, 4, v7\nv_add_u32 v7, s6, v7")
    k("s_lshl_b32 s6, s47, 12\nv_add_u32 v8, s6, v3\ns_lshl_b32 s6, s48, 14\nv_add_u32 v11, s6, v3")
    k(f"s_lshl_b32 s4, s49, 12\ns_add_u32 s4, s4, {EX}\nv_add_u32 v212, s4, v3\nv_bfe_u32 v14, v0, 2, 2\nv_and_b32 v15, 3, v0")
    k("v_lshl_add_u32 v213, v10, 4, v14\nv_lshlrev_b32 v213, 6, v213\nv_lshl_add_u32 v213, v15, 3, v213\nv_bfe_u32 v214, v0, 4, 1\nv_lshl_add_u32 v213, v214, 5, v213")
    k(f"s_lshl_b32 s4, s49, 11\ns_add_u32 s4, s4, {XR}\nv_add_u32 v213, s4, v213")
    k(f"v_mul_u32_u24 v214, 80, v9\nv_lshl_add_u32 v214, v10, 5, v214\ns_mul_i32 s4, s49, 2560\ns_add_u32 s4, s4, {TR}\nv_add_u32 v214, s4, v214")
    k("v_lshrrev_b32 v219, 4, v2\nv_lshl_add_u32 v215, v219, 3, v14\nv_mul_u32_u24 v215, 80, v215\nv_lshl_add_u32 v215, v15, 3, v215\nv_add_u32 v215, s4, v215")
    k(f"v_lshlrev_b32 v216, 13, v10\nv_lshl_add_u32 v216, v9, 2, v216\ns_lshl_b32 s38, s32, 7\ns_add_u32 s38, s38, {ST3}")
    k("v_and_b32 v217, 15, v0\nv_lshlrev_b32 v217, 6, v217\nv_lshl_add_u32 v217, v219, 4, v217\ns_lshl_b32 s39, s49, 11\ns_add_u32 s39, s39, s44\ns_add_u32 s39, s39, 0x200000")
    k("v_lshlrev_b32 v218, 10, v9\nv_lshl_add_u32 v218, v10, 5, v218\ns_lshl_b32 s40, s32, 15\ns_lshl_b32 s3, s33, 8\ns_add_u32 s40, s40, s3\ns_lshl_b32 s3, s49, 6\ns_add_u32 s40, s40, s3")
    L = k.label("np"); Lp = k.label("pl")
    k(f"s_cmp_lg_u32 s47, 6\ns_cbranch_scc1 {L}\ns_lshl_b32 s4, s32, 8\ns_add_u32 s4, s4, s62\nv_and_b32 v5, 15, v2\nv_lshlrev_b32 v5, 2, v5\ns_mov_b32 s5, 0x40000")
    k(f"{Lp}:\ns_sleep 1\nbuffer_load_dword v4, v5, s[28:31], s4 offen sc1\ns_sub_u32 s5, s5, 1\ns_cbranch_scc1 {L}\ns_waitcnt vmcnt(0)\nv_cmp_ne_u32 vcc, 1, v4\ns_cbranch_vccnz {Lp}\n{L}:")
    k("s_barrier")
    stamp(k, 28, "phi_rdy")
    k(f"buffer_load_dwordx4 v3, s[28:31], s46 offen {SC} lds")
    for i in range(8):
        k(f"buffer_load_dwordx4 {v(PH+4*i,4)}, v3, s[28:31], s42 offen offset:{1024*(i%4)} {SC}")
        if i == 3: k("s_add_u32 s42, s42, 4096")
    k("s_waitcnt vmcnt(8)")
def p3(k, Lfinal):
    KS = 64; WF = WF3
    k(f"buffer_load_dwordx2 {v(KS+32,2)}, v12, s[28:31], s37 offen {SC}")
    for i in range(8):
        k(f"buffer_load_dwordx4 {v(KS+4*i,4)}, v3, s[28:31], s36 offen offset:{1024*(i%4)} {SC}")
        if i == 3: k("s_add_u32 s36, s36, 4096")
    stamp(k, 30, "p3_iss")
    AC = 196
    for i in range(4): k(f"ds_read_b64_tr_b16 {v(48+2*i,2)}, v213 offset:{256*i}")
    k("s_cmp_eq_u32 s48, 0\ns_cselect_b32 s6, -1, 0")
    for i in range(8):
        k(f"v_and_b32 v{48+i}, s6, v{48+i}\nv_lshlrev_b32 v{AC+2*i}, 16, v{48+i}\nv_and_b32 v{AC+1+2*i}, 0xffff0000, v{48+i}")
    k(f"v_cvt_pk_bf16_f32 v{KS+32}, v{KS+32}, v{KS+33}")
    FA = 48; D0 = 16
    def cv(h):
        k(f"s_mov_b32 exec_lo, {hex([0xffff,0xffff0000,0,0][h])}\ns_mov_b32 exec_hi, {hex([0,0,0xffff,0xffff0000][h])}\nds_write_b32 v6, v{KS+32} offset:{(h%2)*HS+16*80}\ns_mov_b64 exec, -1")
        for i in range(2):
            b = KS + 8 * h + 4 * i
            k(f"v_cvt_pk_bf16_f32 v{b}, v{b}, v{b+1}\nv_cvt_pk_bf16_f32 v{b+1}, v{b+2}, v{b+3}")
            k(f"ds_write_b64 v13, {v(b,2)} offset:{(h%2)*HS+i*640}")
        for s_ in range(2): k(f"ds_read_b128 {v(FA+8*(h%2)+4*s_,4)}, v7 offset:{(h%2)*HS+32*s_}")
    def mm(h):
        d = D0 + 16 * (h % 2)
        for s_ in range(2):
            k(f"v_mfma_f32_32x32x16_bf16 {v(d,16)}, {v(FA+8*(h%2)+4*s_,4)}, {v(PH+8*h+4*s_,4)}, {'0' if s_==0 else v(d,16)}")
    def norm(h):
        d = D0 + 16 * (h % 2)
        k(f"v_add_f32 v{d+8}, {f32(1e-6)}, v{d+8}\nv_rcp_f32 v{d+8}, v{d+8}")
        for r in range(8): k(f"v_mul_f32 v{d+r}, v{d+r}, v{d+8}")
        for r in range(4): k(f"v_cvt_pk_bf16_f32 v{d+12+r}, v{d+2*r}, v{d+2*r+1}")
        k(f"ds_write_b128 v8, {v(d+12,4)} offset:{OB+1024*h}")
    cv(0); cv(1); mm(0); mm(1); cv(2); norm(0); mm(2); cv(3); norm(1); mm(3); norm(2); norm(3)
    stamp(k, 31, "p3_o")
    k("s_waitcnt lgkmcnt(0)\ns_barrier")
    OF = 32; NB = 8
    def rdo(i): k(f"ds_read_b128 {v(OF+4*(i%NB),4)}, v11 offset:{OB+1024*i}")
    nr = 3
    for i in range(nr): rdo(i)
    for i in range(16):
        k(f"v_mfma_f32_32x32x16_bf16 {v(AC,16)}, {v(WF+4*i,4)}, {v(OF+4*(i%NB),4)}, {v(AC,16)}")
        for _ in range(2):
            if nr < 16 and nr - i <= NB: rdo(nr); nr += 1
    stamp(k, 32, "p3_mm")
    Ly = k.label("young"); Le = k.label("p3e")
    k(f"s_cmp_eq_u32 s48, 1\ns_cbranch_scc1 {Ly}")
    for c in range(4): k(f"ds_write_b128 v212, {v(AC+4*c,4)} offset:{1024*c}")
    k(f"s_waitcnt lgkmcnt(0)\ns_barrier\ns_cmp_eq_u32 s50, 1\ns_cbranch_scc1 {Lfinal}\ns_branch {Le}")
    k(f"{Ly}:")
    k("s_barrier")
    for c in range(4): k(f"ds_read_b128 {v(64+4*c,4)}, v212 offset:{1024*c}")
    for i in range(8): k(f"v_pk_add_f32 {v(AC+2*i,2)}, {v(AC+2*i,2)}, {v(64+2*i,2)}")
    for i in range(8): k(f"v_cvt_pk_bf16_f32 v{32+i}, v{AC+2*i}, v{AC+2*i+1}")
    stamp(k, 33, "p3_ex")
    Lf = k.label("l0")
    k(f"s_cmp_eq_u32 s50, 0\ns_cbranch_scc1 {Lf}")
    k("buffer_store_dwordx4 v[32:35], v218, s[24:27], s40 offen\nbuffer_store_dwordx4 v[36:39], v218, s[24:27], s40 offen offset:16")
    k(f"s_branch {Lfinal}")
    k(f"{Lf}:")
    k("ds_write_b128 v214, v[32:35]\nds_write_b128 v214, v[36:39] offset:16")
    for i in range(4): k(f"ds_read_b64_tr_b16 {v(44+2*i,2)}, v215 offset:{32*(i>>1)+320*(i&1)}")
    for i in range(4): k(f"v_pk_mul_f32 {v(64+2*i,2)}, {v(AC+2*i,2)}, {v(AC+2*i,2)}\nv_pk_add_f32 {v(72+2*i,2)}, {v(AC+2*i,2)}, {v(AC+8+2*i,2)}")
    for i in range(4): k(f"v_pk_fma_f32 {v(64+2*i,2)}, {v(AC+8+2*i,2)}, {v(AC+8+2*i,2)}, {v(64+2*i,2)}")
    k("v_pk_add_f32 v[72:73], v[72:73], v[74:75]\nv_pk_add_f32 v[76:77], v[76:77], v[78:79]\nv_pk_add_f32 v[64:65], v[64:65], v[66:67]\nv_pk_add_f32 v[68:69], v[68:69], v[70:71]")
    k("v_pk_add_f32 v[72:73], v[72:73], v[76:77]\nv_pk_add_f32 v[64:65], v[64:65], v[68:69]")
    k("v_add_f32 v40, v72, v73\nv_add_f32 v41, v64, v65")
    k("v_permlane32_swap_b32 v40, v41\nv_add_f32 v40, v40, v41")
    k("buffer_atomic_add_f32 v40, v216, s[28:31], s38 offen")
    k(f"buffer_store_dwordx4 v[44:47], v217, s[28:31], s39 offen {SC}\nbuffer_store_dwordx4 v[48:51], v217, s[28:31], s39 offen offset:1024 {SC}")
    k(f"{Le}:")
    stamp(k, 34, "p3_st")

NAME = "interleave_layers__ssm_conv_s4d__linear_kernel_hedgehog__prompt"
def build():
    k = Kernel("mg")
    k(f"{NAME}_kernel:")
    k("s_cmp_ge_u32 s2, 256\ns_cbranch_scc1 mg_end")
    if STAMPS: k("v_mov_b32 v242, 0\nv_mov_b32 v243, 0")
    stamp(k, 0, "start"); stamp(k, 56, "rt_start")
    phase0(k)
    k("mg_layer:")
    conv(k)
    k("s_waitcnt vmcnt(0)\ns_barrier")
    stamp(k, 15, "cv_drain"); stamp(k, 57, "rt_cv")
    arrive(k, 0)
    p2_setup(k)
    poll(k, 4)
    k("s_barrier")
    stamp(k, 16, "B1"); stamp(k, 58, "rt_B1")
    p2(k)
    p3_setup(k)
    poll(k, 0)
    k("s_barrier")
    stamp(k, 27, "B2"); stamp(k, 60, "rt_B2")
    p3(k, "mg_fin")
    k("s_waitcnt vmcnt(0) lgkmcnt(0)\ns_barrier")
    stamp(k, 35, "p3_drain"); stamp(k, 61, "rt_p3")
    arrive(k, 0)
    k("v_lshlrev_b32 v8, 4, v0")
    for i in range(3): k(f"ds_write_b128 v8, {v(KP+4*i,4)} offset:{L_KI+8192*i}")
    zero_upads(k); zero_wpads(k)
    k(f"s_mov_b32 s50, 1\ns_mov_b32 s52, {XB2}\ns_mov_b32 s53, {ST3}\ns_mov_b32 s54, {KV+KVL}\ns_mov_b32 s55, {PHI+4*MB}\ns_mov_b32 s62, {PCNT+16384}")
    poll(k, 0)
    k("s_waitcnt lgkmcnt(0)\ns_barrier")
    stamp(k, 36, "B3"); stamp(k, 62, "rt_B3")
    if STAMPS: k("v_mov_b32 v242, v243")
    k("s_branch mg_layer")
    k("mg_fin:")
    stamp_flush(k)
    k("mg_end:\ns_endpgm")
    k.finish()
    return k

if __name__ == "__main__":
    hdr = "".join(l for l in open(f"cdna_kernels/{NAME}.s.ref").read().splitlines(True) if l.startswith(";") and "@launch" not in l and "Override" not in l and "grid=ceil" not in l)
    K = build()
    out = sys.argv[1] if len(sys.argv) > 1 else f"cdna_kernels/{NAME}.s"
    open(out, "w").write(build_file(hdr, [(f"{NAME}_kernel", 256, 512, LDS_BYTES)], [(K, [f"{NAME}_kernel"])]))
    if STAMPS:
        import json; json.dump(STAMP_NAMES, open("stamp_names.json", "w"))
    print("instrs", len(K.items), "vgpr", K.maxreg("v") + 1)
```

```python
from common import *
import sys
LDS_BYTES = 163840
SC = "sc1"
def arrive(k, wave, base="s56"):
    L = k.label("na")
    k(f"s_cmp_lg_u32 s47, {wave}\ns_cbranch_scc1 {L}")
    k(f"s_bfe_u32 s4, s2, 0x30003\ns_lshl_b32 s4, s4, 8\ns_add_u32 s4, s4, {base}")
    k("v_mov_b32 v4, 1\nv_lshlrev_b32 v5, 11, v2\ns_mov_b64 exec, 0xff\nbuffer_atomic_add v4, v5, s[28:31], s4 offen sc1\ns_mov_b64 exec, -1")
    k(f"{L}:")
def poll(k, wave, base="s56", cnt=32):
    L = k.label("np"); Lp = k.label("pl"); Lo = k.label("po")
    k(f"s_cmp_lg_u32 s47, {wave}\ns_cbranch_scc1 {L}")
    k(f"s_and_b32 s4, s2, 7\ns_lshl_b32 s4, s4, 11\ns_add_u32 s4, s4, {base}\nv_lshlrev_b32 v5, 8, v2\ns_mov_b64 exec, 0xff\ns_mov_b32 s5, 0x40000")
    k(f"{Lp}:\ns_sleep 1\nbuffer_load_dword v4, v5, s[28:31], s4 offen sc1\ns_sub_u32 s5, s5, 1\ns_cbranch_scc1 {Lo}")
    k(f"s_waitcnt vmcnt(0)\nv_cmp_ne_u32 vcc, {cnt}, v4\ns_cbranch_vccnz {Lp}")
    k(f"{Lo}:\ns_mov_b64 exec, -1\n{L}:")
    if base == "s56": k("s_add_u32 s56, s56, 16384")

L_KI = 0
UQ = 82 * 16; U4 = 24576; UC = 4 * UQ
WIN = U4 + 2 * UC + 128
WOFF = [0, 3200, 6400, 6400 + 2176, 6400 + 2 * 2176]; WC = 6400 + 3 * 2176
YB = 0; YS = 8 * 68 * 16
assert 4 * YS <= WIN and WIN + 2 * WC <= 65536
L_W = 65536
TP = 528; TA = 65536; TB = TA + 2 * 32 * TP; RC = TA + 4 * 32 * TP
XT = RC + 2560
WS_ = XT + 8192
KP = 244

def ceval(k, dst, er, ei, P, t):
    if P == 1:
        k(f"v_exp_f32 v{t}, v{er}\nv_fract_f32 v{t+1}, v{ei}")
    else:
        k(f"v_mul_f32 v{t}, {f32(P)}, v{er}\nv_mul_f32 v{t+1}, {f32(P)}, v{ei}")
        k(f"v_exp_f32 v{t}, v{t}\nv_fract_f32 v{t+1}, v{t+1}")
    k(f"v_cos_f32 v{dst}, v{t+1}\nv_sin_f32 v{dst+1}, v{t+1}")
    k(f"v_mul_f32 v{dst}, v{dst}, v{t}\nv_mul_f32 v{dst+1}, v{dst+1}, v{t}")
def cmul(k, d, a_, w, wn, t):
    k(f"v_pk_mul_f32 {v(t,2)}, {v(a_,2)}, {v(w,2)} op_sel:[0,0] op_sel_hi:[0,1]")
    k(f"v_pk_fma_f32 {v(d,2)}, {v(a_,2)}, {v(wn,2)}, {v(t,2)} op_sel:[1,0,0] op_sel_hi:[1,1,1]")
def neg_rot(k, wn, w):
    k(f"v_sub_f32 v{wn}, 0, v{w+1}\nv_mov_b32 v{wn+1}, v{w}")

def kgen_tables(k, sdt):
    k(f"s_lshl_b32 s4, s{sdt}, 16\ns_and_b32 s5, s{sdt}, 0xffff0000")
    k(f"s_bitcmp1_b32 s47, 1\ns_cselect_b32 s4, s5, s4")
    k(f"v_mov_b32 v14, {LOG2E}\nv_mul_f32 v15, s4, v14\nv_exp_f32 v15, v15")
    k("v_lshlrev_b32 v10, 16, v10\nv_mul_f32 v10, v10, v14\nv_exp_f32 v10, v10")
    k("v_cvt_pk_bf16_f32 v15, v15, v10")
    k("v_and_b32 v10, 0xffff0000, v15\nv_lshlrev_b32 v15, 16, v15")
    k("v_lshlrev_b32 v11, 16, v11")
    k("v_mul_f32 v10, v10, v15\nv_mul_f32 v11, v11, v15")
    k(f"v_mul_f32 v10, {f32(-1.4426950408889634)}, v10\nv_mul_f32 v11, 0.15915494, v11")
    k(f"v_and_b32 v16, 127, v0\nv_lshlrev_b32 v16, 2, v16\nv_bfe_u32 v17, v0, 7, 1")
    k(f"v_mul_u32_u24 v17, {32*TP}, v17\nv_add_u32 v16, v16, v17\nv_add_u32 v16, {TA}, v16")
    Lr = k.label("role1"); Ld = k.label("tabdone")
    k(f"s_cmp_ge_u32 s47, 4\ns_cbranch_scc1 {Lr}")
    TBo = TB - TA
    ceval(k, 20, 10, 11, 8, 18); neg_rot(k, 22, 20)
    k(f"v_mov_b32 v28, 0x3f80\nds_write_b32 v16, v28 offset:{TBo}")
    k(f"v_cvt_pk_bf16_f32 v29, v20, v21\nds_write_b32 v16, v29 offset:{TBo+TP}")
    cur = 20
    for i in range(2, 32):
        d = 24 if i % 2 == 0 else 26
        cmul(k, d, cur, 20, 22, 18); cur = d
        o = 28 + (i % 2)
        k(f"v_cvt_pk_bf16_f32 v{o}, v{d}, v{d+1}\nds_write_b32 v16, v{o} offset:{TBo+i*TP}")
    k(f"s_branch {Ld}\n{Lr}:")
    ceval(k, 20, 10, 11, 1, 18); neg_rot(k, 22, 20)
    ceval(k, 24, 10, 11, 256, 18); neg_rot(k, 26, 24)
    k("v_add_f32 v15, v15, v15\nv_lshlrev_b32 v12, 16, v12\nv_lshlrev_b32 v13, 16, v13")
    k("v_mul_f32 v30, v12, v15\nv_mul_f32 v31, v13, v15")
    cnt = [0]
    def put(r, rows):
        o = 28 + (cnt[0] % 2); cnt[0] += 1
        k(f"v_cvt_pk_bf16_f32 v{o}, v{r}, -v{r+1}")
        for row in rows: k(f"ds_write_b32 v16, v{o} offset:{row*TP}")
    put(30, [0])
    for i in range(1, 9):
        cmul(k, 30 + 2 * i, 28 + 2 * i, 20, 22, 18)
        if i < 8: put(30 + 2 * i, [i])
    g = lambda i: 30 + 2 * i
    for i, rows in ((0, [8]), (2, [9]), (4, [10, 12]), (6, [13]), (8, [14]), (4, [16]), (8, [17]), (4, [20]), (8, [21]), (8, [18]), (8, [19]), (8, [22]), (8, [23])):
        cmul(k, g(i), g(i), 24, 26, 18); put(g(i), rows)
    k(f"{Ld}:")

def kgen_mfma_scatter(k):
    k(f"v_and_b32 v16, 31, v0\nv_bfe_u32 v17, v0, 5, 1")
    k(f"v_mul_u32_u24 v18, {TP}, v16\nv_lshl_add_u32 v18, v17, 4, v18")
    k(f"s_mul_i32 s4, s47, {32*TP}\ns_add_u32 s4, s4, {TA}\nv_add_u32 v18, s4, v18")
    NB = 6
    def rd(ks):
        b = 40 + 8 * (ks % NB)
        k(f"ds_read_b128 {v(b,4)}, v18 offset:{ks*32}\nds_read_b128 {v(b+4,4)}, v18 offset:{TB-TA+ks*32}")
    for ks in range(NB): rd(ks)
    k("v_lshlrev_b32 v19, 3, v16\nv_lshl_add_u32 v19, v17, 2, v19")
    k(f"s_mul_i32 s4, s47, 1280\ns_add_u32 s4, s4, {RC + 2*(572-256)}")
    k("v_lshlrev_b32 v36, 1, v19\nv_sub_u32 v36, s4, v36")
    k(f"s_mul_i32 s5, s47, {KI_CH}\ns_add_u32 s5, s5, {L_KI+KI_MID}")
    k("v_cmp_eq_u32 vcc, 63, v2\nv_lshlrev_b32 v37, 2, v2\nv_sub_u32 v37, s5, v37")
    k("v_lshl_add_u32 v19, v17, 6, v16\nv_lshlrev_b32 v19, 1, v19\nv_sub_u32 v19, s5, v19")
    for ks in range(16):
        b = 40 + 8 * (ks % NB)
        k(f"v_mfma_f32_32x32x16_bf16 v[20:35], {v(b,4)}, {v(b+4,4)}, {'0' if ks==0 else 'v[20:35]'}")
        if ks + NB < 16: rd(ks + NB)
    k("v_cvt_pk_bf16_f32 v38, v23, v22\nv_cvt_pk_bf16_f32 v39, v21, v20\nds_write_b64 v36, v[38:39] offset:512")
    k("v_cvt_pk_bf16_f32 v40, v26, v25\nv_cvt_pk_bf16_f32 v41, v24, v24\nds_write_b64 v36, v[40:41]")
    k(f"v_cndmask_b32 v42, v29, 0, vcc\nv_cvt_pk_bf16_f32 v42, v42, v28\nds_write_b32 v37, v42 offset:{2*382}")
    k(f"v_cvt_pk_bf16_f32 v45, v30, v31\nds_write_b16 v19, v45 offset:{1280+2*127}\nds_write_b16_d16_hi v19, v45 offset:{1280+2*(127-32)}")
    k("s_and_saveexec_b64 s[6:7], vcc")
    k("v_mov_b32 v46, 0\nv_cvt_pk_bf16_f32 v46, v46, v26\nv_cvt_pk_bf16_f32 v47, v26, v26")
    k(f"s_sub_u32 s4, s4, {2*(572-256)-120}\nv_mov_b32 v48, s4\nds_write_b64 v48, v[46:47]")
    k(f"v_mov_b32 v48, s5\nds_write_b32 v48, v29 offset:{1280+512}")
    k("s_mov_b64 exec, s[6:7]")

WSL = WS_; WPH = WSL + 8192
def wp_loads(k):
    k("s_bfe_u32 s58, s2, 0x20002\ns_lshr_b32 s32, s2, 4\ns_and_b32 s33, s2, 3")
    k("s_mov_b32 s40, s80\ns_mov_b32 s41, s81\ns_mov_b32 s42, 0x180000\ns_movk_i32 s35, 3072\ns_lshl_b32 s34, s58, 10")
    L = k.label("nwo")
    k(f"s_cmp_lg_u32 s58, 3\ns_cbranch_scc1 {L}\ns_mov_b32 s40, s84\ns_mov_b32 s41, s85\ns_mov_b32 s42, 0x80000\ns_movk_i32 s35, 1024\ns_mov_b32 s34, 0\n{L}:")
    k("v_lshrrev_b32 v14, 4, v0\nv_mul_lo_u32 v14, v14, s35\nv_and_b32 v15, 15, v0\nv_lshl_add_u32 v14, v15, 4, v14")
    k(f"s_mul_i32 s4, s35, s32\ns_lshl_b32 s4, s4, 5\ns_add_u32 s34, s34, s4\ns_lshl_b32 s4, s33, 8\ns_add_u32 s34, s34, s4\ns_lshl_b32 s5, s47, 10\ns_add_u32 m0, s5, {WSL}")
    k("buffer_load_dwordx4 v14, s[40:43], s34 offen lds")
    k("s_mov_b32 s40, s82\ns_mov_b32 s41, s83\ns_mov_b32 s42, 16384")
    k(f"s_lshl_b32 s33, s33, 2\ns_add_u32 s33, s33, s49\ns_lshl_b32 s4, s33, 10\ns_lshl_b32 s5, s49, 10\ns_add_u32 m0, s5, {WPH}")
    k("buffer_load_dwordx4 v3, s[40:43], s4 offen lds")
    k(f"s_mul_i32 s59, s33, 98304\ns_lshl_b32 s4, s58, 10\ns_add_u32 s59, s59, s4\ns_add_u32 s59, s59, {WQ}\ns_lshl_b32 s4, s33, 15\ns_add_u32 s4, s4, {WO}")
    k("s_cmp_eq_u32 s58, 3\ns_cselect_b32 s59, s4, s59\ns_mul_i32 s4, s35, s32\ns_lshl_b32 s4, s4, 1\ns_add_u32 s59, s59, s4\ns_add_u32 s60, s59, s35")
    k(f"s_lshl_b32 s61, s58, 11\ns_lshl_b32 s4, s33, 7\ns_add_u32 s61, s61, s4\ns_add_u32 s61, s61, {CS}")
def wp_compute(k):
    k("v_and_b32 v16, 31, v0\nv_bfe_u32 v17, v0, 5, 1")
    k(f"s_lshl_b32 s4, s49, 6\ns_add_u32 s4, s4, {WSL}\nv_lshl_add_u32 v18, v16, 8, s4\nv_lshl_add_u32 v18, v17, 4, v18")
    k(f"s_lshl_b32 s4, s49, 10\ns_add_u32 s4, s4, {WPH}\nv_bfe_u32 v21, v0, 2, 2\nv_lshl_add_u32 v21, v17, 3, v21\nv_lshl_add_u32 v21, v21, 5, s4")
    k("v_and_b32 v22, 1, v0\nv_lshl_add_u32 v22, v22, 9, v21\nv_bfe_u32 v23, v0, 1, 1\nv_lshl_add_u32 v22, v23, 3, v22\nv_bfe_u32 v23, v0, 4, 1\nv_lshl_add_u32 v22, v23, 4, v22")
    k("ds_read_b64_tr_b16 v[24:25], v22\nds_read_b64_tr_b16 v[26:27], v22 offset:128")
    k("ds_read_b64_tr_b16 v[40:41], v21 offset:24\nds_read_b64_tr_b16 v[42:43], v21 offset:152")
    k("ds_read_b128 v[44:47], v18\nds_read_b128 v[48:51], v18 offset:32")
    k("v_bfe_u32 v19, v16, 2, 1\nv_lshrrev_b32 v20, 3, v16\nv_and_b32 v23, 3, v16\nv_lshl_add_u32 v20, v20, 2, v23")
    Lnv = k.label("notv"); Lid = k.label("ident"); Lb = k.label("bdone")
    k(f"s_cmp_lg_u32 s58, 2\ns_cbranch_scc1 {Lnv}\nv_lshrrev_b32 v19, 4, v16\nv_and_b32 v20, 15, v16\n{Lnv}:")
    for j in range(4): k(f"v_mov_b32 v{36+j}, 0")
    k(f"s_cmp_ge_u32 s58, 2\ns_cbranch_scc1 {Lid}")
    k(f"s_cmp_lg_u32 s58, 0\ns_cbranch_scc1 {Lb}")
    for j in range(4): k(f"v_mov_b32_dpp v{36+j}, v{40+j} quad_perm:[3,3,3,3] row_mask:0xf bank_mask:0xf")
    for j in range(4): k(f"v_xor_b32 v{36+j}, 0x80008000, v{36+j}")
    k(f"s_branch {Lb}\n{Lid}:")
    k("v_lshlrev_b32 v28, 3, v17\nv_sub_u32 v23, v20, v28")
    k("v_and_b32 v28, 1, v23\nv_lshlrev_b32 v28, 4, v28\nv_mov_b32 v29, 0x3f80\nv_lshlrev_b32 v29, v28, v29\nv_ashrrev_i32 v23, 1, v23")
    for j in range(4): k(f"v_cmp_eq_u32 vcc, {j}, v23\nv_cndmask_b32 v{24+j}, 0, v29, vcc")
    k(f"{Lb}:")
    k("v_cmp_eq_u32 vcc, 0, v19")
    for j in range(4):
        k(f"v_cndmask_b32 v{28+j}, 0, v{24+j}, vcc\nv_cndmask_b32 v{32+j}, v{24+j}, 0, vcc\nv_cndmask_b32 v{36+j}, 0, v{36+j}, vcc")
    k("v_mfma_f32_32x32x16_bf16 v[64:79], v[44:47], v[28:31], 0\nv_mfma_f32_32x32x16_bf16 v[64:79], v[48:51], v[32:35], v[64:79]\nv_mfma_f32_32x32x16_bf16 v[64:79], v[44:47], v[36:39], v[64:79]")
    k("s_cmp_eq_u32 s58, 0\ns_cselect_b32 s4, 27, 99\nv_cmp_eq_u32 vcc, s4, v16\nv_mov_b32 v23, 0x3f803f80")
    for j in range(8): k(f"v_cvt_pk_bf16_f32 v{80+j}, v{64+2*j}, v{65+2*j}")
    for j in range(8): k(f"v_cndmask_b32 v{80+j}, v{80+j}, v23, vcc")
    k(f"buffer_store_dwordx4 v[80:83], v3, s[28:31], s59 offen {SC}\nbuffer_store_dwordx4 v[84:87], v3, s[28:31], s60 offen {SC}")
    k("v_mov_b32 v240, 0\nv_mov_b32 v241, 0")
    for j in range(8): k(f"v_dot2c_f32_bf16 v{240+(j%2)}, v{80+j}, v23")
    k("v_add_f32 v240, v240, v241\nv_mov_b32 v241, v240\nv_permlane32_swap_b32 v240, v241\nv_add_f32 v240, v240, v241")

def zero_upads(k):
    k("v_mov_b32 v4, 0\nv_mov_b32 v5, 0\nv_mov_b32 v6, 0\nv_mov_b32 v7, 0")
    k(f"v_and_b32 v8, 7, v0\nv_mul_u32_u24 v8, {UQ}, v8\nv_lshrrev_b32 v9, 3, v0\nv_lshl_add_u32 v8, v9, 4, v8")
    k(f"v_cmp_gt_u32 vcc, 144, v0\ns_and_saveexec_b64 s[6:7], vcc\nds_write_b128 v8, v[4:7] offset:{U4}\ns_mov_b64 exec, s[6:7]")

def zero_wpads(k):
    L = k.label("zw")
    k(f"s_cmp_lg_u32 s47, 7\ns_cbranch_scc1 {L}\ns_mov_b64 exec, 0xf")
    for c in range(2):
        for o in WOFF: k(f"ds_write_b128 v3, v[4:7] offset:{WIN+c*WC+o}")
    k(f"s_mov_b64 exec, -1\n{L}:")

WARM = int(os.environ.get("WARM", "3"))
def phase0(k):
    k(f"s_load_dwordx16 s[64:79], s[0:1], 0\ns_load_dwordx8 s[80:87], s[0:1], 64\ns_load_dwordx4 s[88:91], s[0:1], 96")
    k("v_lshrrev_b32 v1, 6, v0\nv_and_b32 v2, 63, v0\nv_readfirstlane_b32 s47, v1\nv_lshlrev_b32 v3, 4, v2")
    k("s_lshr_b32 s48, s47, 2\ns_and_b32 s49, s47, 3")
    k("s_and_b32 s3, s2, 7\ns_lshl_b32 s3, s3, 5\ns_lshr_b32 s4, s2, 3\ns_add_u32 s57, s3, s4")
    k(f"s_mov_b32 s50, 0\ns_mov_b32 s52, {XB0}\ns_mov_b32 s53, {ST1}\ns_mov_b32 s54, {KV}\ns_mov_b32 s55, {PHI}\ns_mov_b32 s56, {CNT}\ns_mov_b32 s62, {PCNT}")
    k("v_mov_b32 v4, 0\nv_mov_b32 v5, 0\nv_mov_b32 v6, 0\nv_mov_b32 v7, 0")
    k(f"v_lshlrev_b32 v8, 4, v0\nv_add_u32 v10, {RC}, v8\nv_cmp_gt_u32 vcc, 160, v0\ns_and_saveexec_b64 s[6:7], vcc\nds_write_b128 v10, v[4:7]")
    k(f"ds_write_b128 v8, v[4:7] offset:{L_KI+KI_MID}\nds_write_b128 v8, v[4:7] offset:{L_KI+KI_CH+KI_MID}\ns_mov_b64 exec, s[6:7]")
    k("s_waitcnt lgkmcnt(0)")
    stamp(k, 1, "karg")
    def mk(d, p, n): k(f"s_mov_b32 s{d}, s{p}\ns_mov_b32 s{d+1}, s{p+1}"); srd_inplace(k, d, n)
    mk(28, 90, WS_USED); mk(24, 86, 2097152); mk(20, 88, 256); mk(40, 64, 2097152)
    Lz = k.label("nz")
    k(f"s_cmp_lg_u32 s2, 0\ns_cbranch_scc1 {Lz}\ns_cmp_lg_u32 s47, 3\ns_cbranch_scc1 {Lz}")
    k(f"v_lshlrev_b32 v9, 8, v2\ns_mov_b32 s4, {CNT0}\nbuffer_store_dword v4, v9, s[28:31], s4 offen sc1")
    k(f"{Lz}:")
    if WARM & 1:
        Lt = k.label("nt")
        k(f"s_cmp_lg_u32 s47, 6\ns_cbranch_scc1 {Lt}\nv_lshlrev_b32 v9, 19, v2\nbuffer_load_dword v238, v9, s[28:31], 0 offen sc1\nbuffer_load_dword v239, v9, s[24:27], 0 offen sc1\n{Lt}:")
    if WARM & 2:
        Lt = k.label("nt")
        k(f"s_cmp_lg_u32 s47, 7\ns_cbranch_scc1 {Lt}\ns_getpc_b64 s[4:5]\nmg_pc:\nv_lshlrev_b32 v9, 7, v2")
        for i in range(3): k(f"global_load_dword v{236+i}, v9, s[4:5]\nv_add_u32 v9, 8192, v9\nv_min_u32 v9, mg_end-mg_pc, v9")
        k(f"{Lt}:")
    k("s_lshl_b32 s4, s2, 13\nbuffer_load_dwordx4 v[52:55], v8, s[40:43], s4 offen")
    k("v_lshrrev_b32 v9, 4, v0\nv_lshlrev_b32 v9, 10, v9\nv_and_b32 v10, 15, v0\nv_lshl_add_u32 v9, v10, 4, v9")
    k(f"s_lshr_b32 s4, s2, 2\ns_lshl_b32 s4, s4, 15\ns_and_b32 s5, s2, 3\ns_lshl_b32 s5, s5, 8\ns_add_u32 s4, s4, s5\ns_lshl_b32 s5, s47, 10\ns_add_u32 m0, s5, {XT}")
    k("buffer_load_dwordx4 v9, s[40:43], s4 offen lds")
    k("s_lshl_b32 s5, s57, 2\ns_add_u32 s74, s74, s5\ns_addc_u32 s75, s75, 0\ns_add_u32 s76, s76, s5\ns_addc_u32 s77, s77, 0\ns_load_dword s46, s[74:75], 0\ns_load_dword s51, s[76:77], 0")
    k("v_and_b32 v9, 255, v0\nv_lshlrev_b32 v9, 1, v9\ns_lshl_b32 s3, s57, 9")
    for i in range(4):
        mk(40, 66 + 2 * i, 131072)
        k(f"buffer_load_ushort v{10+i}, v9, s[40:43], s3 offen")
    k(f"s_mul_i32 s4, s2, {ZERO_BYTES//256}\ns_add_u32 s4, s4, {KV}")
    k(f"v_cmp_gt_u32 vcc, {ZERO_BYTES//4096}, v0\ns_and_saveexec_b64 s[6:7], vcc\nbuffer_store_dwordx4 v[4:7], v8, s[28:31], s4 offen {SC}\ns_mov_b64 exec, s[6:7]")
    wp_loads(k)
    k("v_mov_b32 v56, 0\nv_mov_b32 v57, 0\nv_mov_b32 v58, 0x3f803f80")
    for i in range(4): k(f"v_dot2c_f32_bf16 v56, v{52+i}, v58\nv_dot2c_f32_bf16 v57, v{52+i}, v{52+i}")
    stamp(k, 2, "xrow")
    Lz = k.label("nz")
    k(f"s_cmp_lg_u32 s2, 0\ns_cbranch_scc1 {Lz}\ns_cmp_lg_u32 s47, 3\ns_cbranch_scc1 {Lz}")
    k(f"v_mov_b32 v59, 1\ns_mov_b64 exec, 1\nbuffer_store_dword v59, v4, s[20:23], 0 offen sc1\ns_mov_b64 exec, -1\n{Lz}:")
    k("v_permlane32_swap_b32 v56, v57\nv_add_f32 v56, v56, v57")
    row16_sum(k, 56)
    k("v_mov_b32 v57, v56\nv_permlane16_swap_b32 v56, v57\nv_add_f32 v56, v56, v57")
    k(f"s_lshl_b32 s4, s2, 5\ns_lshl_b32 s5, s47, 2\ns_add_u32 s4, s4, s5\ns_add_u32 s4, s4, {ST1}")
    k("v_lshlrev_b32 v58, 8, v2\ns_mov_b32 exec_lo, 1\ns_mov_b32 exec_hi, 1")
    k(f"buffer_store_dword v56, v58, s[28:31], s4 offen {SC}\ns_mov_b64 exec, -1")
    k("v_mov_b32 v59, v10")
    k("v_lshrrev_b32 v56, 4, v2\nv_bfe_u32 v57, v0, 2, 2\nv_lshl_add_u32 v57, v56, 3, v57\nv_lshlrev_b32 v57, 8, v57\nv_and_b32 v58, 3, v0\nv_lshl_add_u32 v57, v58, 3, v57")
    k(f"s_lshl_b32 s4, s47, 5\ns_add_u32 s4, s4, {XT}\nv_add_u32 v57, s4, v57")
    k("s_barrier")
    k("ds_read_b64_tr_b16 v[52:53], v57\nds_read_b64_tr_b16 v[54:55], v57 offset:1024")
    k("v_and_b32 v58, 15, v0\nv_lshlrev_b32 v58, 6, v58\nv_lshl_add_u32 v58, v56, 4, v58")
    k(f"s_lshl_b32 s4, s2, 13\ns_lshl_b32 s5, s47, 10\ns_add_u32 s4, s4, s5\ns_add_u32 s4, s4, {XB0}")
    k(f"buffer_store_dwordx4 v[52:55], v58, s[28:31], s4 offen {SC}")
    k("v_mov_b32 v61, 0\nbuffer_load_dword v60, v61, s[20:23], 0 offen sc1")
    stamp(k, 3, "xT")
    kgen_tables(k, 46)
    stamp(k, 4, "tables")
    k("s_waitcnt vmcnt(0) lgkmcnt(0)\ns_barrier")
    stamp(k, 5, "bar1")
    Lq = k.label("fq"); Lp = k.label("fp")
    k(f"s_cmp_lg_u32 s47, 2\ns_cbranch_scc1 {Lq}\ns_mov_b32 s5, 0x40000\n{Lp}:\nv_cmp_ne_u32 vcc, 0, v60\ns_cbranch_vccnz {Lq}\ns_sub_u32 s5, s5, 1\ns_cbranch_scc1 {Lq}")
    k(f"buffer_load_dword v60, v61, s[20:23], 0 offen sc1\ns_branch {Lp}\n{Lq}:")
    arrive(k, 2, CNT0)
    L2 = k.label("nm"); L3 = k.label("nw1")
    k(f"s_cmp_ge_u32 s47, 2\ns_cbranch_scc1 {L2}")
    kgen_mfma_scatter(k)
    k(f"{L2}:\ns_cmp_lt_u32 s47, 4\ns_cbranch_scc1 {L3}")
    wp_compute(k)
    k(f"{L3}:")
    stamp(k, 6, "kmfma")
    k("s_waitcnt lgkmcnt(0)\ns_barrier")
    k("v_and_b32 v16, 255, v0\nv_lshrrev_b32 v17, 8, v0")
    k(f"v_lshrrev_b32 v18, 1, v16\nv_lshlrev_b32 v18, 2, v18\nv_mul_u32_u24 v19, 1280, v17\nv_add_u32 v18, v18, v19")
    k(f"v_add_u32 v18, {RC}, v18\nv_and_b32 v19, 1, v0\nv_lshlrev_b32 v19, 4, v19")
    k(f"v_mul_u32_u24 v20, {KI_CH}, v17\nv_lshl_add_u32 v20, v16, 4, v20\nv_add_u32 v21, 1024, v18")
    for i in range(3):
        b = 24 + 10 * i; ar, o = ("v18", 128 * i) if i < 2 else ("v21", 0)
        k(f"ds_read2_b32 {v(b,2)}, {ar} offset0:{o} offset1:{o+1}\nds_read2_b32 {v(b+2,2)}, {ar} offset0:{o+2} offset1:{o+3}\nds_read_b32 v{b+4}, {ar} offset:{4*o+16}")
    for i in range(3):
        b = 24 + 10 * i
        for j in range(4): k(f"v_alignbit_b32 v{b+6+j}, v{b+j+1}, v{b+j}, v19")
        if i == 2: k("v_cmp_gt_u32 vcc, 88, v16\ns_and_saveexec_b64 s[6:7], vcc")
        k(f"ds_write_b128 v20, {v(b+6,4)} offset:{L_KI+4096*i}")
    k("s_mov_b64 exec, s[6:7]")
    zero_upads(k); zero_wpads(k)
    stamp(k, 7, "slots")
    poll(k, 3, CNT0)
    k("s_waitcnt vmcnt(0) lgkmcnt(0)\ns_barrier")
    stamp(k, 8, "B0")
    arrive(k, 3, CNTW)
    Lc = k.label("ncs")
    k(f"s_cmp_lt_u32 s47, 4\ns_cbranch_scc1 {Lc}\nv_lshlrev_b32 v5, 2, v2\ns_mov_b32 exec_hi, 0\nbuffer_atomic_add_f32 v240, v5, s[28:31], s61 offen\ns_mov_b64 exec, -1\n{Lc}:")
    k("v_lshlrev_b32 v8, 4, v0")
    for i in range(3): k(f"ds_read_b128 {v(KP+4*i,4)}, v8 offset:{L_KI+8192*i}")

def w_preload(k):
    k(f"s_lshr_b32 s4, s2, 4\ns_mul_i32 s4, s4, 98304\ns_mul_i32 s5, s49, 24576\ns_add_u32 s4, s4, s5\ns_add_u32 s4, s4, {WQ}")
    for i in range(24):
        if i % 4 == 0: k(f"s_add_u32 m0, s5, {L_W+1024*i}")
        k(f"buffer_load_dwordx4 v3, s[28:31], s4 offen offset:{1024*(i%4)} {SC} lds")
        if i % 4 == 3 and i < 23: k("s_add_u32 s4, s4, 4096")

PRIO1 = int(os.environ.get("PRIO1", "1"))
def conv(k):
    k("v_lshlrev_b32 v8, 4, v0\nv_lshrrev_b32 v9, 3, v0")
    k("v_lshlrev_b32 v10, 15, v9\nv_and_b32 v11, 7, v0\nv_lshl_add_u32 v10, v11, 3, v10")
    k("s_lshl_b32 s37, s57, 7\ns_add_u32 s40, s37, s52\ns_add_u32 s41, s40, 0x200000\ns_add_u32 s42, s53, 8192")
    k(f"buffer_load_dwordx2 v[24:25], v10, s[28:31], s40 offen {SC}\nbuffer_load_dwordx2 v[26:27], v10, s[28:31], s40 offen offset:64 {SC}")
    k(f"buffer_load_dwordx4 v[16:19], v8, s[28:31], s53 offen {SC}\nbuffer_load_dwordx4 v[20:23], v8, s[28:31], s42 offen {SC}")
    k(f"v_bfe_u32 v12, v0, 1, 2\nv_mul_u32_u24 v12, {UQ}, v12\nv_lshl_add_u32 v12, v9, 4, v12\nv_and_b32 v13, 1, v0\nv_lshl_add_u32 v12, v13, 3, v12")
    k(f"v_mov_b32 v14, {L_KI+KI_K1024}\nds_read_b32 v62, v14\nds_read_b32 v63, v14 offset:{KI_CH}")
    Lh = k.label("h0"); Lj = k.label("j0")
    k(f"s_cmp_ge_u32 s47, 4\ns_cbranch_scc1 {Lh}")
    mfma_addr(k)
    k(f"s_branch {Lj}\n{Lh}:")
    k(f"v_and_b32 v54, 127, v0\ns_lshr_b32 s4, s49, 1\ns_mul_i32 s5, s4, {UC}\ns_mul_i32 s6, s4, {WC}\ns_add_u32 s6, s6, {WIN+64}")
    for i, d in enumerate((-1, 0, 1)):
        k(f"v_add_u32 v48, {72+d}, v54\nv_and_b32 v49, 3, v48\nv_mul_u32_u24 v49, {UQ}, v49\nv_lshrrev_b32 v48, 2, v48\nv_lshl_add_u32 v48, v48, 4, v49\nv_add_u32 v{50+i}, s5, v48")
    k("v_lshl_add_u32 v53, v54, 4, s6")
    k(f"{Lj}:")
    k(f"s_mov_b32 s4, {f32(1/512)}\nv_mov_b32 v14, {f32(1e-5)}")
    for c in range(2):
        for i in range(2): k(f"v_lshlrev_b32 v{28+4*c+2*i}, 16, v{24+2*c+i}\nv_and_b32 v{29+4*c+2*i}, 0xffff0000, v{24+2*c+i}")
    for i in range(4): k(f"v_mul_f32 v{16+i}, s4, v{16+i}")
    stamp(k, 10, "cv_ld")
    for i in range(4): k(f"v_fma_f32 v{20+i}, s4, v{20+i}, v14")
    for i in range(4): k(f"v_fma_f32 v{20+i}, -v{16+i}, v{16+i}, v{20+i}")
    for i in range(4): k(f"v_max_f32 v{20+i}, v{20+i}, v14")
    for i in range(4): k(f"v_rsq_f32 v{20+i}, v{20+i}")
    k("s_lshl_b32 s4, s51, 16\ns_and_b32 s5, s51, 0xffff0000")
    for c in range(2):
        for i in range(4): k(f"v_sub_f32 v{36+4*c+i}, v{28+4*c+i}, v{16+i}")
    for c in range(2):
        for i in range(4): k(f"v_mul_f32 v{36+4*c+i}, v{36+4*c+i}, v{20+i}")
        k(f"v_cvt_pk_bf16_f32 v{44+2*c}, v{36+4*c}, v{37+4*c}\nv_cvt_pk_bf16_f32 v{45+2*c}, v{38+4*c}, v{39+4*c}")
        k(f"ds_write_b64 v12, {v(44+2*c,2)} offset:{U4+c*UC+18*16}")
    for c in range(2):
        for i in range(4): k(f"v_fma_f32 v{28+4*c+i}, v{36+4*c+i}, s{4+c}, v{28+4*c+i}")
    k(f"v_mul_u32_u24 v12, {68*16}, v11\nv_lshl_add_u32 v12, v9, 4, v12")
    k(f"v_lshlrev_b32 v13, 3, v0\nv_subrev_u32 v13, {2048-64}, v13\nv_max_i32 v13, 0, v13")
    k("s_waitcnt lgkmcnt(0)\ns_barrier")
    stamp(k, 11, "cv_u")
    def eterm(part=None):
        if part in (None, 0): k(f"ds_read_b64 v[40:41], v13 offset:{WIN+WOFF[4]}\nds_read_b64 v[42:43], v13 offset:{WIN+WC+WOFF[4]}")
        for c in range(2):
            if part is not None and part != c + 1: continue
            for i in range(2):
                k(f"v_lshlrev_b32 v38, 16, v{40+2*c+i}\nv_and_b32 v39, 0xffff0000, v{40+2*c+i}")
                k(f"v_fmac_f32 v{28+4*c+2*i}, v38, v{62+c}\nv_fmac_f32 v{29+4*c+2*i}, v39, v{62+c}")
    Lh = k.label("help"); Le = k.label("epi")
    k(f"s_cmp_ge_u32 s47, 4\ns_cbranch_scc1 {Lh}")
    mfma_part(k, eterm)
    k(f"s_branch {Le}\n{Lh}:")
    if PRIO1: k(f"s_setprio {PRIO1}")
    windows(k, 0)
    stamp(k, 12, "near/win")
    Lc = k.label("cc"); Ln = k.label("nwl"); Lo = k.label("odd"); Ld = k.label("dd")
    k(f"s_cmp_lg_u32 s50, 0\ns_cbranch_scc1 {Ln}")
    poll(k, 7, CNTW)
    k(f"{Ln}:\ns_waitcnt lgkmcnt(0)\ns_setprio 2\ns_barrier\ns_bitcmp1_b32 s47, 0\ns_cbranch_scc1 {Lo}")
    windows(k, 1)
    k(f"s_waitcnt lgkmcnt(0)\ns_barrier\n{Lo}:\ns_cmp_lg_u32 s50, 0\ns_cbranch_scc1 {Lc}")
    w_preload(k)
    k(f"{Lc}:\ns_bitcmp0_b32 s47, 0\ns_cbranch_scc1 {Ld}\ns_barrier\n{Ld}:\ns_setprio 0")
    eterm()
    k(f"{Le}:")
    stamp(k, 13, "midfar")
    k("s_waitcnt lgkmcnt(0)\ns_barrier")
    for i in range(4): k(f"ds_read_b128 {v(48+4*i,4)}, v12 offset:{YB+i*YS}")
    for c in range(2):
        for h in range(2):
            for i in range(0, 4, 2): k(f"v_pk_add_f32 {v(28+4*c+i,2)}, {v(28+4*c+i,2)}, {v(48+8*c+4*h+i,2)}")
        k(f"v_cvt_pk_bf16_f32 v{44+2*c}, v{28+4*c}, v{29+4*c}\nv_cvt_pk_bf16_f32 v{45+2*c}, v{30+4*c}, v{31+4*c}")
        k(f"buffer_store_dwordx2 {v(44+2*c,2)}, v10, s[28:31], s41 offen offset:{64*c} {SC}")
    stamp(k, 14, "cv_st")

def windows(k, ps):
    b = 64
    if ps == 0:
        for p in range(2):
            k(f"ds_read_b64 {v(b+8*p,2)}, v50 offset:{U4+512*p+8}\nds_read_b128 {v(b+8*p+2,4)}, v51 offset:{U4+512*p}\nds_read_b64 {v(b+8*p+6,2)}, v52 offset:{U4+512*p}")
    b += 8 * ps
    P = 80
    lo_i, hi_i = (0, 16) if ps == 0 else (2, 14)
    for i in range(lo_i // 2, hi_i // 2): k(f"v_lshlrev_b32 v{P+2*i}, 16, v{b+i}\nv_and_b32 v{P+1+2*i}, 0xffff0000, v{b+i}")
    for i in range(lo_i + 1, hi_i): k(f"v_add_f32 v{P+i}, v{P+i}, v{P-1+i}")
    wins = ((-2, 2), (-1, 1), (-4, 4), (-3, 3), (-4, 2))
    for ai, (lo, hi) in enumerate(wins if ps == 0 else wins[:2]):
        t = 96 + 8 * (ai % 2); o = 112 + 4 * (ai % 2)
        src = []
        for i in range(8):
            h_ = i + 4 + hi; l_ = i + 4 + lo - 1
            if l_ < lo_i: src.append(P + h_)
            else: k(f"v_sub_f32 v{t+i}, v{P+h_}, v{P+l_}"); src.append(t + i)
        for i in range(4): k(f"v_cvt_pk_bf16_f32 v{o+i}, v{src[2*i]}, v{src[2*i+1]}")
        k(f"ds_write_b128 v53, {v(o,4)} offset:{WOFF[ai]+2048*ps}")
    if ps == 0:
        k(f"v_cmp_eq_u32 vcc, 0, v54\ns_and_saveexec_b64 s[6:7], vcc\nv_subrev_u32 v48, 8, v53")
        k(f"v_cvt_pk_bf16_f32 v96, v{P+4}, v{P+5}\nv_cvt_pk_bf16_f32 v97, v{P+6}, v{P+7}\nv_cvt_pk_bf16_f32 v98, v{P+3}, v{P+4}\nv_cvt_pk_bf16_f32 v99, v{P+5}, v{P+6}")
        k(f"ds_write_b32 v48, v96 offset:{WOFF[0]+4}\nds_write_b32 v48, v98 offset:{WOFF[1]+4}\nds_write_b64 v48, v[96:97] offset:{WOFF[2]}")
        k(f"ds_write_b64 v48, v[98:99] offset:{WOFF[3]}\nds_write_b32 v48, v96 offset:{WOFF[4]+4}\ns_mov_b64 exec, s[6:7]")

def mfma_addr(k):
    k("v_and_b32 v48, 31, v0\nv_bfe_u32 v49, v0, 5, 1\ns_lshr_b32 s4, s47, 1\ns_and_b32 s5, s47, 1")
    k("v_lshlrev_b32 v50, 3, v49\nv_sub_u32 v50, v50, v48\nv_lshlrev_b32 v50, 4, v50")
    k(f"s_mul_i32 s6, s4, {KI_CH}\ns_lshl_b32 s7, s5, 8\ns_add_u32 s7, s7, s6\ns_add_u32 s7, s7, {L_KI+16*31}\nv_add_u32 v50, s7, v50")
    k(f"v_mul_u32_u24 v51, {UQ}, v49\nv_lshl_add_u32 v51, v48, 4, v51")
    k(f"s_mul_i32 s7, s4, {UC}\ns_mul_i32 s38, s5, {2*UQ}\ns_add_u32 s7, s7, s38\ns_add_u32 s7, s7, {U4+16}\nv_add_u32 v51, s7, v51")
    k("v_bfe_u32 v52, v0, 2, 2\nv_and_b32 v53, 3, v0\nv_bfe_u32 v54, v0, 4, 1")
    k("v_lshlrev_b32 v55, 3, v53\nv_lshl_add_u32 v55, v54, 5, v55")
    k(f"v_and_b32 v56, 1, v52\nv_mul_u32_u24 v53, {WOFF[1]}, v56\nv_mul_u32_u24 v54, {WOFF[3]-WOFF[2]}, v56")
    k("v_lshl_add_u32 v56, v49, 3, v52")
    k(f"s_mul_i32 s7, s4, {WC}\ns_add_u32 s7, s7, {WIN}")
    k("s_lshl_b32 s38, s5, 7\ns_add_u32 s38, s38, s7\nv_lshl_add_u32 v57, v56, 3, v55\nv_add3_u32 v57, s38, v57, v53")
    k(f"s_lshl_b32 s38, s5, 8\ns_add_u32 s38, s38, s7\ns_add_u32 s38, s38, {WOFF[2]}\nv_lshl_add_u32 v58, v56, 4, v55\nv_add3_u32 v58, s38, v58, v54")
    k("v_sub_u32 v59, v49, v48\nv_lshlrev_b32 v59, 4, v59")
    k(f"s_lshl_b32 s38, s5, 5\ns_add_u32 s38, s38, s6\ns_add_u32 s39, s38, {L_KI+KI_MID+496}\nv_add_u32 v59, s39, v59")
    k("v_lshlrev_b32 v60, 1, v49\nv_sub_u32 v60, v60, v48\nv_lshlrev_b32 v60, 3, v60")
    k(f"s_add_u32 s39, s38, {L_KI+KI_FAR+248}\nv_add_u32 v60, s39, v60")
    k(f"v_mul_u32_u24 v61, {68*16}, v49\nv_lshl_add_u32 v61, v48, 4, v61\ns_mul_i32 s7, s47, {YS}\ns_add_u32 s7, s7, {YB}\nv_add_u32 v61, s7, v61")
    for m in range(18): k(f"ds_read_b128 {v(NA+4*m,4)}, v50 offset:{(17-m)*512}")

A0, A1 = 64, 80
NA = 168
FB = 96
def mfma_part(k, eterm):
    NB = 14
    steps = [("m", i) for i in range(8)] + [("f", i) for i in range(4)] + [("m", i) for i in range(8, 12)]
    def breg(n): return 152 + 4 * (n - 12) if n >= 12 else NA + 4 * n
    def rdB(n):
        t, i = steps[n]; b = breg(n)
        if t == "m": return [f"ds_read_b128 {v(b,4)}, v59 offset:{64*i}"]
        return [f"ds_read_b64 {v(b,2)}, v60 offset:{64*i}\nds_read_b64 {v(b+2,2)}, v60 offset:{64*i+8}"]
    nxt = [0]
    def rd_near():
        e = nxt[0]; nxt[0] += 1; m, g = divmod(e, 2)
        k(f"ds_read_b128 {v(FB+4*(e%NB),4)}, v51 offset:{(17-m)*16+512*g}")
    extra = [x for n in range(12, 16) for x in rdB(n)] + [x for n in range(12) for x in rdB(n)]
    for _ in range(4): rd_near()
    for e in range(36):
        m, g = divmod(e, 2); A = (A0, A1)[g]
        k(f"v_mfma_f32_32x32x16_bf16 {v(A,16)}, {v(NA+4*m,4)}, {v(FB+4*(e%NB),4)}, {'0' if m==0 else v(A,16)}")
        n = 0
        while n < 2 and nxt[0] < 36 and nxt[0] - e <= 10: rd_near(); n += 1
        while n < 2 and extra and e >= 14 and (len(extra) > 12 or 12 - len(extra) < m): k(extra.pop(0)); n += 1
    assert not extra
    stamp(k, 12, "near/win")
    k("s_waitcnt lgkmcnt(0)\ns_barrier")
    def rdA(n):
        t, i = steps[n]; b = FB + 4 * (n % 14)
        if t == "m": k(f"ds_read_b64_tr_b16 {v(b,2)}, v57 offset:{256*i}\nds_read_b64_tr_b16 {v(b+2,2)}, v57 offset:{256*i+32}")
        else: k(f"ds_read_b64_tr_b16 {v(b,2)}, v58 offset:{512*i}\nds_read_b64_tr_b16 {v(b+2,2)}, v58 offset:{512*i+64}")
    na = [0]
    def more(cnt, lim):
        for _ in range(cnt):
            if na[0] < lim: rdA(na[0]); na[0] += 1
    more(2, 12)
    for n, (t, i) in enumerate(steps):
        b = FB + 4 * (n % 14)
        if t == "m" and i < 4:
            k(f"v_mfma_f32_32x32x16_bf16 {v(A0,16)}, {v(b,4)}, {v(152+4*i,4)}, {v(A0,16)}")
            more(1, 12)
        k(f"v_mfma_f32_32x32x16_bf16 {v(A1,16)}, {v(b,4)}, {v(breg(n),4)}, {v(A1,16)}")
        if n == 8: k("s_barrier")
        more(1 if n < 8 else 2, 12 if n < 8 else 16)
        if n == 5: eterm(0)
        if n in (6, 7): eterm(n - 5)
        if 10 <= n < 14: k(f"ds_write_b128 v61, {v(A0+4*(n-10),4)} offset:{(n-10)*2*68*16}")
    for q in range(4): k(f"ds_write_b128 v61, {v(A1+4*q,4)} offset:{q*2*68*16+512}")

PK = 0; VF = 4096; RB = 6144
def p2_ids(k):
    k("s_and_b32 s3, s2, 7\ns_lshl_b32 s3, s3, 1\ns_bfe_u32 s4, s2, 0x10003\ns_add_u32 s32, s3, s4\ns_lshr_b32 s33, s2, 4")
    k("s_and_b32 s35, s33, 7\ns_lshl_b32 s36, s32, 2\ns_add_u32 s36, s36, s49")

def minmax(k, A, T):
    mx, mn = T + 32, T + 33
    for i in range(5): k(f"v_max3_f32 v{T+i}, v{A+3*i}, v{A+3*i+1}, v{A+3*i+2}\nv_min3_f32 v{T+8+i}, v{A+3*i}, v{A+3*i+1}, v{A+3*i+2}")
    k(f"v_max3_f32 v{T}, v{T}, v{T+1}, v{T+2}\nv_min3_f32 v{T+8}, v{T+8}, v{T+9}, v{T+10}")
    k(f"v_max3_f32 v{T+3}, v{T+3}, v{T+4}, v{A+15}\nv_min3_f32 v{T+11}, v{T+11}, v{T+12}, v{A+15}")
    k(f"v_max_f32 v{mx}, v{T}, v{T+3}\nv_min_f32 v{mn}, v{T+8}, v{T+11}")
QBAR = int(os.environ.get("QBAR", "3")); QPRIO = int(os.environ.get("QPRIO", "1"))
def softmax(k, A, sc, T, O, bar=None):
    mx, mn, bp, bn = T + 32, T + 33, T + 34, T + 36
    k(f"v_mul_f32 v{bp}, v{mx}, v{sc}\nv_mul_f32 v{bn}, v{mn}, v{sc}")
    for i in range(0, 16, 2):
        k(f"v_pk_fma_f32 {v(T+i,2)}, {v(A+i,2)}, {v(sc,2)}, {v(bp,2)} op_sel:[0,0,0] op_sel_hi:[1,0,0] neg_lo:[0,0,1] neg_hi:[0,0,1]")
    for i in range(0, 16, 2):
        k(f"v_pk_fma_f32 {v(T+16+i,2)}, {v(A+i,2)}, {v(sc,2)}, {v(bn,2)} op_sel:[0,0,0] op_sel_hi:[1,0,0] neg_lo:[1,0,0] neg_hi:[1,0,0]")
    for i in range(32): k(f"v_exp_f32 v{T+i}, v{T+i}")
    if bar == 1: k("s_barrier")
    for i in range(8): k(f"v_pk_add_f32 {v(A+2*i,2)}, {v(T+4*i,2)}, {v(T+4*i+2,2)}")
    for i in range(4): k(f"v_pk_add_f32 {v(A+4*i,2)}, {v(A+4*i,2)}, {v(A+4*i+2,2)}")
    k(f"v_pk_add_f32 {v(bp,2)}, {v(A,2)}, {v(A+4,2)}\nv_pk_add_f32 {v(bn,2)}, {v(A+8,2)}, {v(A+12,2)}")
    k(f"v_add_f32 v{bp}, v{bp}, v{bp+1}\nv_add_f32 v{bn}, v{bn}, v{bn+1}")
    k(f"v_rcp_f32 v{bp}, v{bp}\nv_rcp_f32 v{bn}, v{bn}")
    for h, acc in ((0, bp), (1, bn)):
        for i in range(0, 16, 2):
            k(f"v_pk_mul_f32 {v(T+16*h+i,2)}, {v(T+16*h+i,2)}, {v(acc,2)} op_sel:[0,0] op_sel_hi:[1,0]")
    if bar == 2: k("s_barrier")
    for i in range(16): k(f"v_cvt_pk_bf16_f32 v{O+i}, v{T+2*i}, v{T+2*i+1}")

WF3 = 132
def p3_wo_base(k):
    k(f"s_lshr_b32 s43, s2, 6\ns_lshl_b32 s43, s43, 2\ns_add_u32 s43, s43, s49\ns_lshl_b32 s43, s43, 15\ns_lshl_b32 s5, s48, 14\ns_add_u32 s43, s43, s5\ns_add_u32 s43, s43, {WO}")
def p3_wo_load(k, i):
    k(f"buffer_load_dwordx4 {v(WF3+4*i,4)}, v3, s[28:31], s43 offen offset:{1024*(i%4)} {SC}")
    if i % 4 == 3 and i < 15: k("s_add_u32 s43, s43, 4096")

QX = 8192
LCT = QX + 4352
def p2_setup(k):
    p2_ids(k); p3_wo_base(k)
    k("s_lshl_b32 s37, s36, 15\ns_add_u32 s37, s37, s52\ns_add_u32 s37, s37, 0x200000\ns_lshl_b32 s42, s49, 14")
    k("v_bfe_u32 v9, v0, 5, 1\nv_and_b32 v8, 31, v0\nv_add_u32 v220, s42, v3\nv_lshl_add_u32 v221, v2, 2, s42")
    L = k.label("hs"); Le = k.label("hse")
    k(f"s_cmp_ge_u32 s47, 4\ns_cbranch_scc1 {L}")
    for i in range(16): p3_wo_load(k, i)
    k("v_bfe_u32 v6, v0, 2, 2\nv_lshl_add_u32 v6, v9, 2, v6\nv_lshlrev_b32 v6, 6, v6")
    k("v_bfe_u32 v7, v0, 4, 1\nv_lshl_add_u32 v6, v7, 5, v6\nv_and_b32 v7, 3, v0\nv_lshl_add_u32 v6, v7, 3, v6\nv_add_u32 v6, s42, v6")
    k("s_and_b32 s5, s49, 1\ns_lshr_b32 s6, s49, 1\nv_and_b32 v14, 15, v0\nv_bfe_u32 v15, v0, 4, 1")
    k(f"s_lshl_b32 s4, s5, 8\ns_add_u32 s4, s4, {VF}\nv_lshl_add_u32 v222, v14, 4, s4\nv_lshl_add_u32 v222, v15, 9, v222\nv_lshl_add_u32 v222, v9, 10, v222")
    k("v_bfe_u32 v11, v0, 2, 2\nv_lshl_add_u32 v11, v15, 2, v11")
    k("s_lshl_b32 s4, s6, 1\nv_bfe_u32 v13, v0, 1, 1\nv_or_b32 v13, s4, v13\nv_lshrrev_b32 v15, 1, v11\nv_xor_b32 v13, v13, v15")
    k("v_lshl_add_u32 v11, v9, 4, v11\nv_lshlrev_b32 v11, 6, v11\nv_lshl_add_u32 v11, v13, 4, v11\nv_and_b32 v13, 1, v0\nv_lshl_add_u32 v11, v13, 3, v11")
    k(f"s_lshl_b32 s4, s5, 11\ns_add_u32 s4, s4, {PK}\nv_add_u32 v223, s4, v11")
    k("s_lshl_b32 s4, s33, 1\ns_add_u32 s4, s4, s5\ns_lshl_b32 s6, s6, 6\ns_add_u32 s6, s6, s54\ns_lshl_b32 s38, s4, 11\ns_add_u32 s38, s38, s6\ns_lshl_b32 s4, s4, 7\ns_add_u32 s39, s6, s4\ns_add_u32 s39, s39, 65536")
    k("v_lshrrev_b32 v12, 4, v2\nv_lshlrev_b32 v12, 9, v12\nv_lshl_add_u32 v224, v14, 2, v12")
    k("v_lshl_add_u32 v11, v9, 5, v8\nv_lshl_add_u32 v11, v11, 6, s42\nv_bfe_u32 v13, v0, 1, 2\nv_lshl_add_u32 v225, v13, 4, v11")
    for j in range(1, 4): k(f"v_xor_b32 v{225+j}, {16*j}, v225")
    k(f"s_add_u32 s4, s42, {RB}\nv_lshl_add_u32 v229, v8, 2, s4\nv_lshl_add_u32 v7, v9, 4, s4")
    for r in range(232, 236): k(f"v_mov_b32 v{r}, 0x3f803f80")
    k("v_mov_b32 v12, 0\nv_mov_b32 v13, 0")
    k(f"s_branch {Le}\n{L}:\nv_mov_b32 v224, 0")
    k("v_lshlrev_b32 v11, 4, v8\nv_lshl_add_u32 v11, v9, 11, v11")
    k("s_lshl_b32 s38, s36, 16\ns_lshl_b32 s5, s33, 12\ns_add_u32 s38, s38, s5\ns_add_u32 s38, s38, s55\ns_lshl_b32 s39, s36, 8\ns_add_u32 s39, s39, s62\ns_lshl_b32 s5, s33, 2\ns_add_u32 s39, s39, s5")
    k(f"{Le}:")

CSB = [208, 212, 216, 236]
def p2_mean(k, AQ, A):
    k(f"v_mov_b32 v240, v{AQ+15}\nv_mov_b32 v241, v{AQ+15}\nv_mov_b32 v13, v12\ns_mov_b32 s4, {f32(1/512)}")
    k("v_permlane32_swap_b32 v240, v241\nv_permlane32_swap_b32 v12, v13\nv_mul_f32 v240, s4, v240\nv_add_f32 v12, v12, v13")
    for i in range(0, 16, 2):
        k(f"v_pk_fma_f32 {v(A+i,2)}, {v(CSB[i//4]+i%4,2)}, v[240:241], {v(A+i,2)} op_sel:[0,0,0] op_sel_hi:[1,0,1] neg_lo:[0,1,0] neg_hi:[0,1,0]")
def p2_rstd(k):
    k(f"v_mov_b32 v15, {f32(1e-5)}\nv_fma_f32 v12, s4, v12, v15")
    k(f"v_fma_f32 v12, -v240, v240, v12\nv_max_f32 v12, v12, v15\nv_rsq_f32 v12, v12\nv_mul_f32 v14, {LOG2E}, v12")
def cs_loads(k, section):
    k(f"s_lshl_b32 s4, s33, 7\ns_add_u32 s4, s4, {CS+2048*section}\nv_lshlrev_b32 v4, 4, v9")
    for q in range(4): k(f"buffer_load_dwordx4 {v(CSB[q],4)}, v4, s[28:31], s4 offen offset:{32*q} {SC}")

def p2(k):
    LH = k.label("H"); LE = k.label("p2e")
    k(f"s_cmp_ge_u32 s47, 4\ns_cbranch_scc1 {LH}")
    def dma(j):
        n, i = divmod(j, 4)
        if i == 0: k(f"s_add_u32 s44, s35, {n}\ns_and_b32 s44, s44, 7\ns_lshl_b32 s44, s44, 12\ns_add_u32 m0, s42, {(n%4)*4096}\ns_add_u32 s44, s44, s37")
        k(f"buffer_load_dwordx4 v3, s[28:31], s44 offen offset:{1024*i} {SC} lds")
    AQ, AK, AV = 16, 32, 48
    XF = 64; WB = [96, 108, 120, 196]; NW = 4; LA = 3
    issued = [16]
    def rdw(j, ts):
        n, ks = divmod(j, 4)
        wa = f"v{10+(n%2)}"
        if ks == 0 and 0 in ts: k(f"s_add_u32 s45, s35, {n}\ns_and_b32 s45, s45, 7\ns_mul_i32 s45, s45, 12288\ns_add_u32 s45, s45, {L_W}\nv_add_u32 {wa}, s45, v3")
        for t in ts: k(f"ds_read_b128 {v(WB[j%NW]+4*t,4)}, {wa} offset:{ks*3072+t*1024}")
    def rdx(j):
        xb = XF + 4 * (j % 8); so = (j % 16) * 1024
        k(f"s_waitcnt vmcnt({issued[0]-1-j})")
        k(f"ds_read_b64_tr_b16 {v(xb,2)}, v6 offset:{so}\nds_read_b64_tr_b16 {v(xb+2,2)}, v6 offset:{so+512}")
    for j in range(16): dma(j)
    for j in range(LA): rdw(j, (0, 1, 2))
    for j in range(LA): rdx(j)
    stamp(k, 20, "p2_x0")
    for j in range(32):
        xb = XF + 4 * (j % 8); wb = WB[j % NW]
        k(f"v_mfma_f32_32x32x16_bf16 {v(AQ,16)}, {v(wb,4)}, {v(xb,4)}, {'0' if j==0 else v(AQ,16)}")
        if j + LA < 32: rdw(j + LA, (0, 1))
        if j == 16:
            k("s_barrier")
            cs_loads(k, 1); k(f"v_lshlrev_b32 v4, 2, v8\nbuffer_load_dword v230, v4, s[28:31], s4 offen offset:2048 {SC}"); issued[0] += 5
        k(f"v_mfma_f32_32x32x16_bf16 {v(AK,16)}, {v(wb+4,4)}, {v(xb,4)}, {'0' if j==0 else v(AK,16)}")
        if j + LA < 32: rdw(j + LA, (2,))
        if j + 16 < 32: dma(j + 16); issued[0] += 1
        k(f"v_mfma_f32_32x32x16_bf16 {v(AV,16)}, {v(xb,4)}, {v(wb+8,4)}, {'0' if j==0 else v(AV,16)}")
        if j + LA < 32: rdx(j + LA)
        if j == 31:
            for c in range(4): k(f"ds_write_b128 v220, {v(AQ+4*c,4)} offset:{QX+1024*c}")
        if j % 4 == 3:
            for i in range(16):
                r = XF + 4 * ((j - 3) % 8) + i
                k(f"v_dot2c_f32_bf16 v{12+(i%2)}, v{r}, v{r}")
        if j == 15: stamp(k, 21, "p2_half")
    T = 64; O = 104
    k(f"v_add_f32 v12, v12, v13\nds_write_b32 v221, v12 offset:{QX+4096}\nv_mov_b32 v4, {LCT}\nv_mov_b32 v5, 0\nds_write_b32 v221, v5 offset:{LCT}")
    stamp(k, 22, "p2_main")
    p2_mean(k, AQ, AK)
    k("s_waitcnt lgkmcnt(0)\ns_barrier")
    p2_rstd(k)
    k(f"v_mul_f32 v13, v12, v240\nds_write2_b32 v229, v12, v13 offset0:0 offset1:32")
    for q in range(4): k(f"ds_read_b128 {v(AQ+4*q,4)}, v7 offset:{32*q}\nds_read_b128 {v(196+4*q,4)}, v7 offset:{128+32*q}")
    minmax(k, AK, T)
    softmax(k, AK, 14, T, O)
    for j in range(4): k(f"ds_write_b128 v{225+j}, {v(O+4*j,4)} offset:{PK}")
    for i in range(0, 16, 2): k(f"v_pk_mul_f32 {v(AV+i,2)}, {v(AV+i,2)}, {v(AQ+i,2)}")
    for i in range(0, 16, 2): k(f"v_pk_fma_f32 {v(AV+i,2)}, {v(196+i,2)}, v[230:231], {v(AV+i,2)} op_sel:[0,0,0] op_sel_hi:[1,0,1] neg_lo:[0,1,0] neg_hi:[0,1,0]")
    for i in range(8): k(f"v_cvt_pk_bf16_f32 v{120+i}, v{AV+2*i}, v{AV+2*i+1}")
    k(f"ds_write_b128 v220, v[120:123] offset:{VF}\nds_write_b128 v220, v[124:127] offset:{VF+1024}")
    stamp(k, 24, "p2_sm")
    k("s_waitcnt lgkmcnt(0)\ns_barrier")
    for i in range(4):
        k(f"ds_read_b64_tr_b16 {v(64+4*i,2)}, v223 offset:{16384*i}\nds_read_b64_tr_b16 {v(66+4*i,2)}, v223 offset:{16384*i+512}\nds_read_b128 {v(48+4*i,4)}, v222 offset:{16384*i}")
    for i in range(4):
        k(f"v_mfma_f32_16x16x32_bf16 v[20:23], v[232:235], {v(64+4*i,4)}, {'0' if i==0 else 'v[20:23]'}")
        k(f"v_mfma_f32_16x16x32_bf16 v[16:19], {v(48+4*i,4)}, {v(64+4*i,4)}, {'0' if i==0 else 'v[16:19]'}")
    for r in range(4): k(f"buffer_atomic_add_f32 v{16+r}, v224, s[28:31], s38 offen offset:{r*128}")
    k(f"s_mov_b64 exec, 0xffff\nbuffer_atomic_add_f32 v20, v224, s[28:31], s39 offen\ns_mov_b64 exec, 1\nv_mov_b32 v5, 1")
    stamp(k, 25, "p2_out")
    k("s_waitcnt vmcnt(0)\nds_add_rtn_u32 v5, v4, v5\nv_readfirstlane_b32 s4, v5\ns_mov_b64 exec, -1")
    stamp(k, 26, "p2_drain"); stamp(k, 59, "rt_p2")
    k(f"s_cmp_lg_u32 s4, 3\ns_cbranch_scc1 {LE}")
    arrive(k, "s47")
    k(f"s_branch {LE}")
    k(f"{LH}:\ns_barrier")
    cs_loads(k, 0)
    for i in range(16): p3_wo_load(k, i)
    k(f"s_setprio {QPRIO}\ns_barrier")
    k(f"ds_read_b32 v12, v221 offset:{QX+4096}")
    for c in (3, 0, 1, 2): k(f"ds_read_b128 {v(AQ+4*c,4)}, v220 offset:{QX+1024*c}")
    p2_mean(k, AQ, AQ); p2_rstd(k)
    k(f"s_mov_b32 exec_hi, 0\nv_mov_b32 v{AQ+15}, 0\ns_mov_b64 exec, -1")
    minmax(k, AQ, T)
    softmax(k, AQ, 14, T, O, QBAR)
    for j in range(4): k(f"buffer_store_dwordx4 {v(O+4*j,4)}, v11, s[28:31], s38 offen offset:{512*j} {SC}")
    stamp(k, 25, "p2_out")
    if QBAR == 3: k("s_barrier")
    k("s_setprio 0\nv_mov_b32 v4, 1\nv_mov_b32 v5, 0\ns_waitcnt vmcnt(0)")
    k(f"s_mov_b64 exec, 1\nbuffer_store_dword v4, v5, s[28:31], s39 offen sc1\ns_mov_b64 exec, -1")
    stamp(k, 26, "p2_drain")
    k(f"{LE}:")

OB = 0; HS = 17 * 80; KB = 32768; XR = KB + 16 * HS; EX = KB; TR = 0
assert XR + 8192 <= 65536
PH = 100
def p3_setup(k):
    k("s_and_b32 s3, s2, 7\ns_lshl_b32 s3, s3, 3\ns_bfe_u32 s4, s2, 0x30003\ns_add_u32 s32, s3, s4\ns_lshr_b32 s33, s2, 6")
    k("s_lshl_b32 s35, s47, 13\ns_add_u32 s36, s35, s54")
    k("s_lshl_b32 s37, s47, 9\ns_add_u32 s37, s37, s54\ns_add_u32 s37, s37, 65536")
    k("s_lshl_b32 s42, s32, 16\ns_add_u32 s42, s42, s35\ns_add_u32 s42, s42, s55")
    k("s_lshl_b32 s44, s32, 15\ns_lshl_b32 s45, s33, 13\ns_add_u32 s44, s44, s45\ns_add_u32 s44, s44, s52\ns_add_u32 s44, s44, 0x200000")
    k("s_lshl_b32 s45, s47, 10\ns_add_u32 s46, s44, s45")
    k(f"s_add_u32 m0, s45, {XR}\nv_lshlrev_b32 v12, 3, v2")
    k(f"s_mul_i32 s6, s47, {2*HS}\ns_add_u32 s6, s6, {KB}")
    k("v_lshrrev_b32 v13, 3, v2\nv_mul_u32_u24 v13, 80, v13\nv_and_b32 v6, 7, v0\nv_lshl_add_u32 v13, v6, 3, v13\nv_add_u32 v13, s6, v13")
    k("v_and_b32 v7, 15, v0\nv_lshl_add_u32 v6, v7, 2, s6")
    k("v_and_b32 v9, 31, v0\nv_bfe_u32 v10, v0, 5, 1\nv_min_u32 v7, 16, v9\nv_mul_u32_u24 v7, 80, v7\nv_lshl_add_u32 v7, v10, 4, v7\nv_add_u32 v7, s6, v7")
    k("s_lshl_b32 s6, s47, 12\nv_add_u32 v8, s6, v3\ns_lshl_b32 s6, s48, 14\nv_add_u32 v11, s6, v3")
    k(f"s_lshl_b32 s4, s49, 12\ns_add_u32 s4, s4, {EX}\nv_add_u32 v212, s4, v3\nv_bfe_u32 v14, v0, 2, 2\nv_and_b32 v15, 3, v0")
    k("v_lshl_add_u32 v213, v10, 4, v14\nv_lshlrev_b32 v213, 6, v213\nv_lshl_add_u32 v213, v15, 3, v213\nv_bfe_u32 v214, v0, 4, 1\nv_lshl_add_u32 v213, v214, 5, v213")
    k(f"s_lshl_b32 s4, s49, 11\ns_add_u32 s4, s4, {XR}\nv_add_u32 v213, s4, v213")
    k(f"v_mul_u32_u24 v214, 80, v9\nv_lshl_add_u32 v214, v10, 5, v214\ns_mul_i32 s4, s49, 2560\ns_add_u32 s4, s4, {TR}\nv_add_u32 v214, s4, v214")
    k("v_lshrrev_b32 v219, 4, v2\nv_lshl_add_u32 v215, v219, 3, v14\nv_mul_u32_u24 v215, 80, v215\nv_lshl_add_u32 v215, v15, 3, v215\nv_add_u32 v215, s4, v215")
    k(f"v_lshlrev_b32 v216, 13, v10\nv_lshl_add_u32 v216, v9, 2, v216\ns_lshl_b32 s38, s32, 7\ns_add_u32 s38, s38, {ST3}")
    k("v_and_b32 v217, 15, v0\nv_lshlrev_b32 v217, 6, v217\nv_lshl_add_u32 v217, v219, 4, v217\ns_lshl_b32 s39, s49, 11\ns_add_u32 s39, s39, s44\ns_add_u32 s39, s39, 0x200000")
    k("v_lshlrev_b32 v218, 10, v9\nv_lshl_add_u32 v218, v10, 5, v218\ns_lshl_b32 s40, s32, 15\ns_lshl_b32 s3, s33, 8\ns_add_u32 s40, s40, s3\ns_lshl_b32 s3, s49, 6\ns_add_u32 s40, s40, s3")
    L = k.label("np"); Lp = k.label("pl")
    k(f"s_cmp_lg_u32 s47, 6\ns_cbranch_scc1 {L}\ns_lshl_b32 s4, s32, 8\ns_add_u32 s4, s4, s62\nv_and_b32 v5, 15, v2\nv_lshlrev_b32 v5, 2, v5\ns_mov_b32 s5, 0x40000")
    k(f"{Lp}:\ns_sleep 1\nbuffer_load_dword v4, v5, s[28:31], s4 offen sc1\ns_sub_u32 s5, s5, 1\ns_cbranch_scc1 {L}\ns_waitcnt vmcnt(0)\nv_cmp_ne_u32 vcc, 1, v4\ns_cbranch_vccnz {Lp}\n{L}:")
    k("s_barrier")
    stamp(k, 28, "phi_rdy")
    k(f"buffer_load_dwordx4 v3, s[28:31], s46 offen {SC} lds")
    for i in range(8):
        k(f"buffer_load_dwordx4 {v(PH+4*i,4)}, v3, s[28:31], s42 offen offset:{1024*(i%4)} {SC}")
        if i == 3: k("s_add_u32 s42, s42, 4096")
    k("s_waitcnt vmcnt(8)")
def p3(k, Lfinal):
    KS = 64; WF = WF3
    k(f"buffer_load_dwordx2 {v(KS+32,2)}, v12, s[28:31], s37 offen {SC}")
    for i in range(8):
        k(f"buffer_load_dwordx4 {v(KS+4*i,4)}, v3, s[28:31], s36 offen offset:{1024*(i%4)} {SC}")
        if i == 3: k("s_add_u32 s36, s36, 4096")
    stamp(k, 30, "p3_iss")
    AC = 196
    for i in range(4): k(f"ds_read_b64_tr_b16 {v(48+2*i,2)}, v213 offset:{256*i}")
    k("s_cmp_eq_u32 s48, 0\ns_cselect_b32 s6, -1, 0")
    for i in range(8):
        k(f"v_and_b32 v{48+i}, s6, v{48+i}\nv_lshlrev_b32 v{AC+2*i}, 16, v{48+i}\nv_and_b32 v{AC+1+2*i}, 0xffff0000, v{48+i}")
    k(f"v_cvt_pk_bf16_f32 v{KS+32}, v{KS+32}, v{KS+33}")
    FA = 48; D0 = 16
    def cv(h):
        k(f"s_mov_b32 exec_lo, {hex([0xffff,0xffff0000,0,0][h])}\ns_mov_b32 exec_hi, {hex([0,0,0xffff,0xffff0000][h])}\nds_write_b32 v6, v{KS+32} offset:{(h%2)*HS+16*80}\ns_mov_b64 exec, -1")
        for i in range(2):
            b = KS + 8 * h + 4 * i
            k(f"v_cvt_pk_bf16_f32 v{b}, v{b}, v{b+1}\nv_cvt_pk_bf16_f32 v{b+1}, v{b+2}, v{b+3}")
            k(f"ds_write_b64 v13, {v(b,2)} offset:{(h%2)*HS+i*640}")
        for s_ in range(2): k(f"ds_read_b128 {v(FA+8*(h%2)+4*s_,4)}, v7 offset:{(h%2)*HS+32*s_}")
    def mm(h):
        d = D0 + 16 * (h % 2)
        for s_ in range(2):
            k(f"v_mfma_f32_32x32x16_bf16 {v(d,16)}, {v(FA+8*(h%2)+4*s_,4)}, {v(PH+8*h+4*s_,4)}, {'0' if s_==0 else v(d,16)}")
    def norm(h):
        d = D0 + 16 * (h % 2)
        k(f"v_add_f32 v{d+8}, {f32(1e-6)}, v{d+8}\nv_rcp_f32 v{d+8}, v{d+8}")
        for r in range(8): k(f"v_mul_f32 v{d+r}, v{d+r}, v{d+8}")
        for r in range(4): k(f"v_cvt_pk_bf16_f32 v{d+12+r}, v{d+2*r}, v{d+2*r+1}")
        k(f"ds_write_b128 v8, {v(d+12,4)} offset:{OB+1024*h}")
    cv(0); cv(1); mm(0); mm(1); cv(2); norm(0); mm(2); cv(3); norm(1); mm(3); norm(2); norm(3)
    stamp(k, 31, "p3_o")
    k("s_waitcnt lgkmcnt(0)\ns_barrier")
    OF = 32; NB = 8
    def rdo(i): k(f"ds_read_b128 {v(OF+4*(i%NB),4)}, v11 offset:{OB+1024*i}")
    nr = 3
    for i in range(nr): rdo(i)
    for i in range(16):
        k(f"v_mfma_f32_32x32x16_bf16 {v(AC,16)}, {v(WF+4*i,4)}, {v(OF+4*(i%NB),4)}, {v(AC,16)}")
        for _ in range(2):
            if nr < 16 and nr - i <= NB: rdo(nr); nr += 1
    stamp(k, 32, "p3_mm")
    Ly = k.label("young"); Le = k.label("p3e")
    k(f"s_cmp_eq_u32 s48, 1\ns_cbranch_scc1 {Ly}")
    for c in range(4): k(f"ds_write_b128 v212, {v(AC+4*c,4)} offset:{1024*c}")
    k(f"s_waitcnt lgkmcnt(0)\ns_barrier\ns_cmp_eq_u32 s50, 1\ns_cbranch_scc1 {Lfinal}\ns_branch {Le}")
    k(f"{Ly}:")
    k("s_barrier")
    for c in range(4): k(f"ds_read_b128 {v(64+4*c,4)}, v212 offset:{1024*c}")
    for i in range(8): k(f"v_pk_add_f32 {v(AC+2*i,2)}, {v(AC+2*i,2)}, {v(64+2*i,2)}")
    for i in range(8): k(f"v_cvt_pk_bf16_f32 v{32+i}, v{AC+2*i}, v{AC+2*i+1}")
    stamp(k, 33, "p3_ex")
    Lf = k.label("l0")
    k(f"s_cmp_eq_u32 s50, 0\ns_cbranch_scc1 {Lf}")
    k("buffer_store_dwordx4 v[32:35], v218, s[24:27], s40 offen\nbuffer_store_dwordx4 v[36:39], v218, s[24:27], s40 offen offset:16")
    k(f"s_branch {Lfinal}")
    k(f"{Lf}:")
    k("ds_write_b128 v214, v[32:35]\nds_write_b128 v214, v[36:39] offset:16")
    for i in range(4): k(f"ds_read_b64_tr_b16 {v(44+2*i,2)}, v215 offset:{32*(i>>1)+320*(i&1)}")
    for i in range(4): k(f"v_pk_mul_f32 {v(64+2*i,2)}, {v(AC+2*i,2)}, {v(AC+2*i,2)}\nv_pk_add_f32 {v(72+2*i,2)}, {v(AC+2*i,2)}, {v(AC+8+2*i,2)}")
    for i in range(4): k(f"v_pk_fma_f32 {v(64+2*i,2)}, {v(AC+8+2*i,2)}, {v(AC+8+2*i,2)}, {v(64+2*i,2)}")
    k("v_pk_add_f32 v[72:73], v[72:73], v[74:75]\nv_pk_add_f32 v[76:77], v[76:77], v[78:79]\nv_pk_add_f32 v[64:65], v[64:65], v[66:67]\nv_pk_add_f32 v[68:69], v[68:69], v[70:71]")
    k("v_pk_add_f32 v[72:73], v[72:73], v[76:77]\nv_pk_add_f32 v[64:65], v[64:65], v[68:69]")
    k("v_add_f32 v40, v72, v73\nv_add_f32 v41, v64, v65")
    k("v_permlane32_swap_b32 v40, v41\nv_add_f32 v40, v40, v41")
    k("buffer_atomic_add_f32 v40, v216, s[28:31], s38 offen")
    k(f"buffer_store_dwordx4 v[44:47], v217, s[28:31], s39 offen {SC}\nbuffer_store_dwordx4 v[48:51], v217, s[28:31], s39 offen offset:1024 {SC}")
    k(f"{Le}:")
    stamp(k, 34, "p3_st")

NAME = "interleave_layers__ssm_conv_s4d__linear_kernel_hedgehog__prompt"
def build():
    k = Kernel("mg")
    k(f"{NAME}_kernel:")
    k("s_cmp_ge_u32 s2, 256\ns_cbranch_scc1 mg_end")
    if STAMPS: k("v_mov_b32 v242, 0\nv_mov_b32 v243, 0")
    stamp(k, 0, "start"); stamp(k, 56, "rt_start")
    phase0(k)
    k("mg_layer:")
    conv(k)
    k("s_waitcnt vmcnt(0)\ns_barrier")
    stamp(k, 15, "cv_drain"); stamp(k, 57, "rt_cv")
    arrive(k, 0)
    p2_setup(k)
    poll(k, 4)
    k("s_barrier")
    stamp(k, 16, "B1"); stamp(k, 58, "rt_B1")
    p2(k)
    p3_setup(k)
    poll(k, 0)
    k("s_barrier")
    stamp(k, 27, "B2"); stamp(k, 60, "rt_B2")
    p3(k, "mg_fin")
    k("s_waitcnt vmcnt(0) lgkmcnt(0)\ns_barrier")
    stamp(k, 35, "p3_drain"); stamp(k, 61, "rt_p3")
    arrive(k, 0)
    k("v_lshlrev_b32 v8, 4, v0")
    for i in range(3): k(f"ds_write_b128 v8, {v(KP+4*i,4)} offset:{L_KI+8192*i}")
    zero_upads(k); zero_wpads(k)
    k(f"s_mov_b32 s50, 1\ns_mov_b32 s52, {XB2}\ns_mov_b32 s53, {ST3}\ns_mov_b32 s54, {KV+KVL}\ns_mov_b32 s55, {PHI+4*MB}\ns_mov_b32 s62, {PCNT+16384}")
    poll(k, 0)
    k("s_waitcnt lgkmcnt(0)\ns_barrier")
    stamp(k, 36, "B3"); stamp(k, 62, "rt_B3")
    if STAMPS: k("v_mov_b32 v242, v243")
    k("s_branch mg_layer")
    k("mg_fin:")
    stamp_flush(k)
    k("mg_end:\ns_endpgm")
    k.finish()
    return k

if __name__ == "__main__":
    hdr = "".join(l for l in open(f"cdna_kernels/{NAME}.s.ref").read().splitlines(True) if l.startswith(";") and "@launch" not in l and "Override" not in l and "grid=ceil" not in l)
    K = build()
    out = sys.argv[1] if len(sys.argv) > 1 else f"cdna_kernels/{NAME}.s"
    open(out, "w").write(build_file(hdr, [(f"{NAME}_kernel", 256, 512, LDS_BYTES)], [(K, [f"{NAME}_kernel"])]))
    if STAMPS:
        import json; json.dump(STAMP_NAMES, open("stamp_names.json", "w"))
    print("instrs", len(K.items), "vgpr", K.maxreg("v") + 1)
```
